```python
import torch

def _softmax(x, axis=-1):
    return torch.softmax(x, dim=axis)
def _gelu(x):
    return torch.nn.functional.gelu(x, approximate="tanh")
def _silu(x):
    return torch.nn.functional.silu(x)
def _sigmoid(x):
    return torch.sigmoid(x)
def _layernorm(x, axis=-1, eps=1e-5):
    m = x.mean(dim=axis, keepdim=True)
    v = x.var(dim=axis, keepdim=True, unbiased=False)
    return (x - m) / torch.sqrt(v + eps)
def _scatter_add(tgt, idx, src, axis=0):
    return tgt.clone().index_add_(axis, idx, src)
def _segment_sum(src, seg, n):
    out = torch.zeros((n,) + src.shape[1:], dtype=src.dtype)
    return out.index_add_(0, seg, src)
def _pad(x, pw):
    flat = tuple(v for pair in reversed(pw) for v in pair)
    return torch.nn.functional.pad(x, flat)

kernel_name = 'interleave_layers__sliding_block_cached__glu_gated_swiglu__decode'

def setup_inputs():

    _w = (lambda a: (lambda t: t.to(torch.bfloat16) if t.is_floating_point() else t)(torch.as_tensor(a)))
    def _A_setup():
        B, Sq, D = 1, 1, 512
        Hq, Hkv, Sk, Dh = 32, 8, 65536, 128
        assert Hq % Hkv == 0, (Hq, Hkv)
        return {
            "x": _w((lambda *s: torch.randn(*s, dtype=torch.bfloat16) * 0.05)(B, Sq, D)),
            "k_cache": _w((lambda *s: torch.randn(*s, dtype=torch.bfloat16) * 0.8)(B, Hkv, Sk, Dh)),
            "v_cache": _w((lambda *s: torch.randn(*s, dtype=torch.bfloat16) * 0.8)(B, Hkv, Sk, Dh)),
            "wq": _w((lambda *s: torch.randn(*s, dtype=torch.bfloat16) * 0.8)(D, Hq * Dh) * (D ** -0.5)),
            "wo": _w((lambda *s: torch.randn(*s, dtype=torch.bfloat16) * 0.8)(Hq * Dh, D) * ((Hq * Dh) ** -0.5)),
        }
    _A_in = _A_setup()

    def _B_setup():
        B, S, D, F = 1, 1, 512, 1792
        return {
            "x": _w((lambda *s: torch.randn(*s, dtype=torch.bfloat16) * 0.05)(B, S, D)),
            "w1": _w((lambda *s: torch.randn(*s, dtype=torch.bfloat16) * 0.2)(D, F) * (2.0 / D) ** 0.5),
            "w3": _w((lambda *s: torch.randn(*s, dtype=torch.bfloat16) * 0.2)(D, F) * (2.0 / D) ** 0.5),
            "w2": _w((lambda *s: torch.randn(*s, dtype=torch.bfloat16) * 0.2)(F, D) * (2.0 / F) ** 0.5),
        }
    _B_in = _B_setup()

    return {
        "A_x": _A_in["x"],
        "A_k_cache": _A_in["k_cache"],
        "A_v_cache": _A_in["v_cache"],
        "A_wq": _A_in["wq"],
        "A_wo": _A_in["wo"],
        "B_x": _B_in["x"],
        "B_w1": _B_in["w1"],
        "B_w3": _B_in["w3"],
        "B_w2": _B_in["w2"],
    }

def reference(A_x, A_k_cache, A_v_cache, A_wq, A_wo, B_x, B_w1, B_w3, B_w2):
    def _A_ref(x, k_cache, v_cache, wq, wo):
        B, Sq, D = x.shape
        Hq, Dh = 32, 128
        Hkv, Sk = k_cache.shape[1], k_cache.shape[2]
        W = min(4096, max(256, Sk // 4))
        rep = Hq // Hkv
        q = (lambda x, *d: x.permute(*d))((x @ wq).reshape(B, Sq, Hq, Dh), 0, 2, 1, 3)
        k = (lambda x, n, axis: torch.repeat_interleave(x, n, dim=axis))(k_cache[:, :, Sk - W:, :], rep, axis=1)
        v = (lambda x, n, axis: torch.repeat_interleave(x, n, dim=axis))(v_cache[:, :, Sk - W:, :], rep, axis=1)
        scores = torch.einsum("bhqd,bhkd->bhqk", q, k) * (Dh ** -0.5)
        p = _softmax(scores, axis=-1)
        o = torch.einsum("bhqk,bhkd->bhqd", p, v)
        return (lambda x, *d: x.permute(*d))(o, 0, 2, 1, 3).reshape(B, Sq, Hq * Dh) @ wo

    def _B_ref(x, w1, w3, w2):
        gate = torch.einsum("bsd,df->bsf", x, w1)
        up = torch.einsum("bsd,df->bsf", x, w3)
        h = _silu(gate) * up
        out = torch.einsum("bsf,fd->bsd", h, w2)
        return out

    x = A_x
    x = x + _A_ref(_layernorm(x, axis=-1), A_k_cache, A_v_cache, A_wq, A_wo)
    x = x + _B_ref(_layernorm(x, axis=-1), B_w1, B_w3, B_w2)
    x = x + _A_ref(_layernorm(x, axis=-1), A_k_cache, A_v_cache, A_wq, A_wo)
    x = x + _B_ref(_layernorm(x, axis=-1), B_w1, B_w3, B_w2)
    return x
```

```python
import re
TRANS=("v_exp_f32","v_log_f32","v_rcp_f32","v_rsq_f32","v_sqrt_f32")
def split_ops(s):
    out=[];d=0;cur=""
    for ch in s:
        if ch=="[":d+=1
        if ch=="]":d-=1
        if ch=="," and d==0: out.append(cur.strip());cur=""
        else: cur+=ch
    if cur.strip(): out.append(cur.strip())
    return out
def regs(op,kind):
    op=op.strip().split(" ")[0]
    op=op.replace("abs(","").replace(")","").replace("|","").lstrip("-")
    m=re.fullmatch(kind+r"(\d+)",op)
    if m: return {int(m.group(1))}
    m=re.fullmatch(kind+r"\[(\d+):(\d+)\]",op)
    if m: return set(range(int(m.group(1)),int(m.group(2))+1))
    if kind=="s" and op=="vcc": return {"vcc"}
    if kind=="s" and op=="m0": return {"m0"}
    return set()
class Rec: pass
class Asm:
    def __init__(s):
        s.lines=[]; s.h=[]; s.nnop=0
    def raw(s,t): s.lines.append(t)
    def label(s,n): s.lines.append(n+":")
    def flush(s): s.h=[]
    def parse(s,t):
        r=Rec(); p=t.split(None,1); op=p[0]; ops=split_ops(p[1]) if len(p)>1 else []
        r.op=op; r.vw=set(); r.vr=set(); r.sw=set(); r.sr=set(); r.ab=set(); r.c=set()
        r.valu=op.startswith("v_") and not op.startswith("v_mfma"); r.mfma=op.startswith("v_mfma")
        r.vmem=op.startswith("buffer_") or op.startswith("global_"); r.ds=op.startswith("ds_")
        r.dpp=("_dpp" in op); r.perm=op.startswith("v_permlane"); r.trans=op.replace("_e32","").replace("_e64","") in TRANS
        r.salu=op.startswith("s_"); r.states=1; r.wide=set(); r.lds=(" lds" in t and r.vmem)
        V=lambda o:regs(o,"v"); S=lambda o:regs(o,"s")
        if op=="s_nop": r.states=int(ops[0])+1
        elif r.mfma:
            r.vw=V(ops[0]); r.ab=V(ops[1])|V(ops[2]); r.c=V(ops[3]); r.vr=r.ab|r.c
            r.lat = 8 if "16x16x32" in op else (10 if "16x16x4_f32" in op else 12)
        elif r.valu:
            if op.startswith("v_cmp") or op.startswith("v_readfirstlane") or op.startswith("v_readlane"):
                r.sw=S(ops[0]); src=ops[1:]
            elif r.perm:
                r.vw=V(ops[0])|V(ops[1]); src=ops
            else:
                r.vw=V(ops[0]); src=ops[1:]
                if op.startswith("v_fmac") or op.startswith("v_dot2c"): src=ops
            for o in src: r.vr|=V(o); r.sr|=S(o)
        elif r.vmem:
            if "load" in op and not r.lds: r.vw=V(ops[0]); src=ops[1:]
            else: src=ops
            for o in src: r.vr|=V(o); r.sr|=S(o)
            if "store" in op and ("x4" in op or "x3" in op): r.wide=V(ops[0])
        elif r.ds:
            if op.startswith("ds_read"): r.vw=V(ops[0]); src=ops[1:]
            else: src=ops
            for o in src: r.vr|=V(o)
        elif r.salu and ops and not op.startswith("s_cmp") and not op.startswith("s_cbranch") and not op.startswith("s_waitcnt") and op not in("s_branch","s_barrier","s_setprio","s_endpgm","s_sleep"):
            r.sw=S(ops[0])
            for o in ops[1:]: r.sr|=S(o)
        return r
    def need(s,p,c):
        n=0
        if p.valu:
            if c.mfma and p.vw&c.vr: n=max(n,2)
            if (c.dpp or c.perm) and p.vw&c.vr: n=max(n,2)
            if p.trans and c.valu and not c.trans and p.vw&c.vr: n=max(n,1)
            if p.trans and (c.vmem or c.ds) and p.vw&c.vr: n=max(n,1)
            if (c.op.startswith("v_readfirstlane") or c.op.startswith("v_readlane")) and p.vw&c.vr: n=max(n,1)
            if c.valu and p.sw&c.sr: n=max(n,2)
            if c.vmem and p.sw&c.sr: n=max(n,5)
            if c.salu and p.sw&c.sr: n=max(n,1)
        if p.mfma:
            if c.mfma:
                if p.vw&c.ab: n=max(n,p.lat)
                if p.vw&c.c and p.vw!=c.c: n=max(n,p.lat-2)
            elif (c.valu or c.vmem or c.ds) and p.vw&(c.vr|c.vw): n=max(n,p.lat)
            if c.valu and p.c&c.vw: n=max(n,3 if p.lat==8 else 7)
        if p.salu and "m0" in p.sw and c.lds: n=max(n,1)
        if p.wide and c.valu and p.wide&c.vw: n=max(n,2)
        if p.wide and (c.vmem or c.ds) and p.wide&c.vw: n=max(n,1)
        return n
    def __call__(s,t):
        for line in t.split("\n"):
            line=line.split(";")[0].strip()
            if not line: continue
            if line.endswith(":"): s.label(line[:-1]); continue
            c=s.parse(line); d=0; pad=0
            for p in reversed(s.h):
                pad=max(pad,s.need(p,c)-d)
                d+=p.states
                if d>=20: break
            if pad>0:
                s.lines.append(f"    s_nop {pad-1}"); s.h.append(s.parse(f"s_nop {pad-1}")); s.nnop+=pad
            s.lines.append("    "+line); s.h.append(c); s.h=s.h[-24:]
            if c.op in("s_branch","s_endpgm"): s.flush()
    def text(s): return "\n".join(s.lines)+"\n"
```

```python
import sys
from emit import Asm
NAME="interleave_layers__sliding_block_cached__glu_gated_swiglu__decode"
HEADER=open("cdna_kernels/"+NAME+".s.ref").read().split("; Override launch")[0]

WS_S=0x0; WS_FL=0x40000; WS_GR=0x48000; WS_E=0x49000; WS_PF=0x4a000; WS_FB=0x60000; WS_FA=0x80000; WS_DBG=0x180000; WS_SLOW=0x200000
FA_SZ=0x18000; FA_ATT=0; FA_UP=0x10000; FA_Q=0x16000
FB_SZ=0x2000; FB_QCS=0; FB_LAM=0x1000; FB_ST=0x1400
OOB=0x7ff00000
TAGK=0x9E3779B8
L_WQ=0; L_WO=0x4000; L_WU=0x8000; L_W2=0xC000; L_XB=0xE000; L_ONES=0xE100; L_OB=0xE200; L_ML=0xE300; L_MODE=0xE380; L_DUM=0xE400
L_K=0x10000; L_V=0x18000; L_OBUF=0; LDS_BYTES=0x20000
sX,sK,sV,sQ,sO,sU,s2,sOUT,sW,sWF,sWS=[f"s[{i}:{i+3}]" for i in range(4,48,4)]
sg,sc,skq,snb,sw,stag,ssel,sspin,sT0,sT1,sT2,sT3,sA,sB,sC,sD="s52 s53 s54 s55 s56 s57 s58 s59 s60 s61 s62 s63 s64 s65 s66 s67".split()
sWG=sX
sHI="s[68:69]"
STAMP0=70
def q(b): return f"v[{b}:{b+3}]"
def d(b): return f"v[{b}:{b+1}]"
WQ,WO,WU,W2,KF,VF=16,32,48,64,72,104
SEL,SELU,MASK,ONES,PB=136,140,148,156,160
(vSG,vSP,vQP,vQG,vST,vSTP,vAP,vLP,vAG,vLG,vUP,vUG,vXW,vXR,vXRW,vOR,vOW,vORD,vMW,vMR,vCAR,vCS0,vCS1,vCSG,vCSU,vOUT,vWR)=[f"v{i}" for i in range(176,203)]
T=204
SPIN=1<<16

def gen(stamps=False, opts=None):
    o=dict(nt="nt")
    o.update(opts or {})
    A=Asm(); nt=o["nt"]
    ns=[0]
    names=[]
    def stamp(name):
        if stamps and name not in o.get("nostamp",("issued0",)):
            k=STAMP0+2*ns[0]; ns[0]+=1; names.append(name)
            assert k+1<=101
            A(f"s_memrealtime s[{k}:{k+1}]")
    def dpp(ctrl,bank=0xf): return f"{ctrl} row_mask:0xf bank_mask:{bank:#x}"
    def fstore(op,data,addr,soff):
        A(f"{op} {data}, {addr}, {sWF}, {soff} offen")
        A(f"{op} {data}, {addr}, {sWS}, {soff} offen sc1")
    rid=[0]
    def spin():
        rid[0]+=1
        if stamps:
            A(f"s_mov_b32 s3, {rid[0]}")
            if rid[0]<=10: A(f"s_add_u32 {ssel}, {ssel}, {1<<(3*(rid[0]-1))}")
        A(f"s_sub_u32 {sspin}, {sspin}, 1"); A("s_cbranch_scc1 L_giveup")
    def retry(lbl): A(f"s_cbranch_vccnz {lbl}")
    def rs4(dst,t0,t1,D):
        A(f"v_add_f32_dpp v{t0}, v{D}, v{D} "+dpp("row_ror:8",0x3))
        A(f"v_add_f32_dpp v{t1}, v{D+1}, v{D+1} "+dpp("row_ror:8",0x3))
        A(f"v_add_f32_dpp v{t0}, v{D+2}, v{D+2} "+dpp("row_ror:8",0xc))
        A(f"v_add_f32_dpp v{t1}, v{D+3}, v{D+3} "+dpp("row_ror:8",0xc))
        A(f"v_add_f32_dpp v{dst}, v{t0}, v{t0} "+dpp("row_shl:4",0x5))
        A(f"v_add_f32_dpp v{dst}, v{t1}, v{t1} "+dpp("row_shr:4",0xa))
    R16=["quad_perm:[1,0,3,2]","quad_perm:[2,3,0,1]","row_ror:4","row_ror:8"]
    def wtile(srd,base_expr_reg,lds,rs,n,voff):
        A(f"s_lshl_b32 {sT1}, {sw}, {10+(n.bit_length()-1)}")
        A(f"s_add_u32 m0, {sT1}, {lds}")
        for u in range(n):
            if u: A(f"s_add_u32 {base_expr_reg}, {base_expr_reg}, {8*rs-1024}")
            A(f"buffer_load_dwordx4 {voff}, {srd}, {base_expr_reg} offen offset:{1024*u} {nt} lds")
    def kvload(srd,lds,half):
        A(f"s_lshl_b32 {sT1}, {sw}, 13")
        A(f"s_add_u32 m0, {sT1}, {lds+4096*half}")
        A(f"s_add_u32 {sT0}, {sA}, {4096*half}")
        for u in range(4):
            A(f"buffer_load_dwordx4 v{4+(u&1)}, {srd}, {sT0} offen offset:{1024*u} {nt} lds")
    def wfrags(dst,lds):
        for s in range(4):
            for hh in range(2):
                A(f"ds_read_b64_tr_b16 {d(dst+4*s+2*hh)}, {vWR} offset:{lds+(32*s+16*hh)*128}")

    def dump(slot_expr):
        A("s_waitcnt vmcnt(0) lgkmcnt(0)")
        A(f"s_lshl_b32 s48, s2, 3"); A(f"s_add_u32 s48, s48, {slot_expr}"); A("s_lshl_b32 s48, s48, 7"); A(f"s_add_u32 s48, s48, {WS_DBG:#x}")
        A("v_mov_b32 v14, s48")
        for k in range(16):
            A(f"v_mov_b32 v15, s{STAMP0+2*k}"); A(f"buffer_store_dword v15, v14, {sW}, 0 offen offset:{4*k}")
        A(f"v_mov_b32 v15, {sspin}"); A(f"buffer_store_dword v15, v14, {sW}, 0 offen offset:64")
        A(f"v_mov_b32 v15, s42"); A(f"buffer_store_dword v15, v14, {sW}, 0 offen offset:68")
        A(f"v_mov_b32 v15, {sT2}"); A(f"buffer_store_dword v15, v14, {sW}, 0 offen offset:72")
        A(f"v_mov_b32 v15, s3"); A(f"buffer_store_dword v15, v14, {sW}, 0 offen offset:76")
        A(f"v_mov_b32 v15, {ssel}"); A(f"buffer_store_dword v15, v14, {sW}, 0 offen offset:80")
    def hstamp(k):
        if stamps: A(f"s_memrealtime s[{STAMP0+2*k}:{STAMP0+2*k+1}]")
    def helper():
        A("L_helper:")
        A("s_setprio 3")
        for k in range(4,8): A(f"v_mov_b32 v{k}, -1")
        A(f"s_lshr_b32 {sT0}, {sg}, 1"); A(f"s_lshl_b32 {sT0}, {sT0}, 14"); A(f"s_and_b32 {sT1}, {sg}, 1"); A(f"s_lshl_b32 {sT1}, {sT1}, 2"); A(f"s_add_u32 {sT1}, {sT1}, {skq}"); A(f"s_lshl_b32 {sT1}, {sT1}, 3"); A(f"s_add_u32 {sT1}, {sT1}, {snb}"); A(f"s_lshl_b32 {sT1}, {sT1}, 7"); A(f"s_add_u32 {sT0}, {sT0}, {sT1}")
        A("v_lshrrev_b32 v3, 4, v0"); A("v_lshlrev_b32 v3, 16, v3"); A("v_bfe_u32 v8, v0, 3, 1"); A("v_lshl_add_u32 v3, v8, 13, v3"); A("v_and_b32 v8, 7, v0"); A("v_lshl_add_u32 v3, v8, 4, v3")
        A("v_lshlrev_b32 v8, 7, v8"); A("v_lshlrev_b32 v2, 2, v0")
        A(f"s_lshl_b32 {sA}, {sg}, 10"); A(f"s_add_u32 {sA}, {sA}, {WS_PF:#x}")
        A(f"s_mul_i32 {sB}, {sg}, {FA_SZ:#x}"); A(f"s_mul_i32 {sT1}, {sc}, 3072"); A(f"s_add_u32 {sB}, {sB}, {sT1}"); A(f"s_add_u32 {sB}, {sB}, {WS_FA:#x}")
        A(f"s_lshl_b32 {sC}, {sg}, 13"); A(f"s_lshl_b32 {sT1}, {sc}, 8"); A(f"s_add_u32 {sC}, {sC}, {sT1}"); A(f"s_add_u32 {sC}, {sC}, {WS_FB:#x}")
        A(f"s_getreg_b32 {sD}, hwreg(HW_REG_XCC_ID)"); A(f"s_and_b32 {sD}, {sD}, 7")
        if o.get("force_slow"): A(f"s_and_b32 {sD}, {sc}, 1")
        A("s_waitcnt lgkmcnt(0)")
        A("s_add_u32 s36, s36, 0x1fffff"); A("s_addc_u32 s37, s37, 0"); A("s_and_b32 s36, s36, 0xffe00000")
        A(f"s_load_dword {stag}, s[36:37], {WS_E:#x}")
        A(f"buffer_store_dwordx4 v[4:7], v3, {sW}, {sT0} offen sc1")
        A(f"buffer_load_dword v12, v8, {sW}, {sA} offen sc1")
        for k in range(3): A(f"buffer_store_dwordx4 v[4:7], {vQG}, {sW}, {sB} offen offset:{1024*k}")
        A(f"buffer_store_dword v4, v2, {sW}, {sC} offen")
        hstamp(3)
        A(f"s_add_u32 s40, s36, {sA}"); A("s_addc_u32 s41, s37, 0")
        A(f"s_lshl_b32 {sT1}, {sc}, 2"); A(f"s_add_u32 {sT1}, {sT1}, {sA}")
        A(f"s_lshl_b32 {sT2}, {sg}, 12"); A(f"s_add_u32 {sT2}, {sT2}, {WS_FL:#x}"); A(f"s_lshl_b32 {sT3}, {sc}, 7"); A(f"s_add_u32 {sT3}, {sT3}, {sT2}")
        A(f"s_mov_b32 {sspin}, {SPIN}"); A(f"s_mov_b32 s48, 8")
        A("s_waitcnt lgkmcnt(0)")
        A(f"s_add_u32 {stag}, {stag}, {TAGK:#x}"); A(f"s_and_b32 {stag}, {stag}, 0xfffffff8")
        A(f"s_or_b32 s42, {stag}, {sD}"); A("s_mov_b32 s43, s42"); A("v_mov_b32 v9, s42")
        A("s_mov_b64 exec, 0xff")
        A("s_waitcnt vmcnt(0)")
        hstamp(1)
        A(f"buffer_store_dword v9, v8, {sW}, {sT1} offen")
        A("s_mov_b64 exec, 1")
        A(f"buffer_store_dword v9, v8, {sW}, {sT3} offen sc1")
        A("s_mov_b64 exec, -1")
        A("s_waitcnt vmcnt(1)")
        A("L_hpoll:")
        A("s_load_dwordx16 s[4:19], s[40:41], 0"); A("s_load_dwordx16 s[20:35], s[40:41], 64")
        A("s_waitcnt lgkmcnt(0)")
        A("s_xor_b64 s[44:45], s[4:5], s[42:43]")
        for k in range(1,16): A(f"s_xor_b64 s[46:47], s[{4+2*k}:{5+2*k}], s[42:43]"); A("s_or_b64 s[44:45], s[44:45], s[46:47]")
        A("s_cbranch_scc0 L_hfast")
        if stamps: A(f"s_sub_u32 {sspin}, {sspin}, 1")
        A("s_add_u32 s40, s40, 128"); A("s_addc_u32 s41, s41, 0")
        A("s_sub_u32 s48, s48, 1"); A("s_cmp_lg_u32 s48, 0"); A("s_cbranch_scc1 L_hpoll")
        A("s_branch L_hvec")
        A("L_hfast:"); A("s_mov_b32 s44, 1")
        A("L_hok:")
        hstamp(2)
        A(f"v_mov_b32 v8, {L_MODE}"); A("v_mov_b32 v9, s44"); A("ds_write_b32 v8, v9")
        A(f"s_cmp_eq_u32 {sc}, 0"); A("s_cbranch_scc0 L_hdone")
        A(f"s_lshl_b32 {sT0}, {sg}, 7"); A(f"s_add_u32 {sT0}, {sT0}, {WS_GR:#x}"); A(f"v_mov_b32 v10, {sT0}"); A(f"v_mov_b32 v11, {stag}")
        A("s_mov_b64 exec, 1")
        A(f"buffer_store_dword v11, v10, {sW}, 0 offen sc1")
        A("s_mov_b64 exec, -1")
        A("L_hdone:")
        A("s_waitcnt lgkmcnt(0)")
        A("s_barrier")
        if stamps: A("s_branch L_hdump")
        else: A("s_endpgm")
    def helper_slow():
        A("L_hvec:")
        A("v_and_b32 v13, 31, v0"); A("v_lshlrev_b32 v14, 2, v13"); A("v_lshlrev_b32 v13, 7, v13")
        A("L_hvec1:")
        A(f"buffer_load_dword v16, v14, {sW}, {sA} offen sc1")
        A(f"buffer_load_dword v17, v13, {sW}, {sT2} offen sc1")
        A("s_mov_b32 s44, 0")
        A(f"s_sub_u32 {sspin}, {sspin}, 1"); A("s_cbranch_scc1 L_hok")
        A("s_waitcnt vmcnt(0)")
        A("v_cmp_ne_u32 vcc, s42, v16"); A("s_cbranch_vccz L_hfast")
        A(f"v_xor_b32 v18, {stag}, v17"); A("v_cmp_lt_u32 vcc, 7, v18"); A("s_cbranch_vccnz L_hvec1")
        A("v_cmp_ne_u32 vcc, s42, v17"); A("s_cbranch_vccz L_hvec1")
        A(f"s_add_u32 {sB}, {sB}, {WS_SLOW:#x}"); A(f"s_add_u32 {sC}, {sC}, {WS_SLOW:#x}")
        for k in range(3): A(f"buffer_store_dwordx4 v[4:7], {vQG}, {sW}, {sB} offen offset:{1024*k} sc1")
        A(f"buffer_store_dword v4, v2, {sW}, {sC} offen sc1")
        A(f"v_mov_b32 v9, {stag}")
        A("s_waitcnt vmcnt(0)")
        A("s_mov_b64 exec, 1")
        A(f"buffer_store_dword v9, v8, {sW}, {sT3} offen offset:4 sc1")
        A("s_mov_b64 exec, -1")
        A("L_hvec2:")
        A(f"buffer_load_dword v17, v13, {sW}, {sT2} offen offset:4 sc1")
        A(f"s_sub_u32 {sspin}, {sspin}, 1"); A("s_cbranch_scc1 L_hok")
        A("s_waitcnt vmcnt(0)")
        A(f"v_cmp_ne_u32 vcc, {stag}, v17"); A("s_cbranch_vccnz L_hvec2")
        A("s_branch L_hok")
        if stamps:
            A("L_hdump:"); dump("4"); A("s_endpgm")

    A("s_cmp_ge_u32 s2, 256"); A("s_cbranch_scc1 L_end")
    stamp("start")
    if stamps: A("s_mov_b32 s3, 0"); A(f"s_mov_b32 {ssel}, 0")
    for reg,off in ((16,24),(8,8),(4,0),(12,16),(36,88),(20,32),(28,64),(32,72)):
        A(f"s_load_dwordx2 s[{reg}:{reg+1}], s[0:1], {off}")
    A("s_load_dwordx4 s[48:51], s[0:1], 48")
    A("v_lshrrev_b32 v1, 6, v0"); A("v_and_b32 v0, 63, v0")
    A(f"s_and_b32 {sg}, s2, 7"); A(f"s_lshr_b32 {sc}, s2, 3")
    A(f"v_readfirstlane_b32 {sw}, v1")
    A("s_getpc_b64 s[40:41]"); A("s_and_b32 s40, s40, 0xffffff00"); A(f"s_mov_b32 s42, L_codeend-{NAME}_kernel"); A("s_mov_b32 s43, 0x20000")
    A(f"s_mul_i32 {sT0}, {sc}, 5"); A(f"s_add_u32 {sT0}, {sT0}, {sw}"); A(f"s_and_b32 {sT0}, {sT0}, {o.get('pfmask',15)}"); A(f"s_lshl_b32 {sT0}, {sT0}, 10")
    A(f"v_lshlrev_b32 {vQG}, 4, v0")
    A(f"buffer_load_dwordx4 v[252:255], {vQG}, s[40:43], {sT0} offen offset:{o.get('pfoff',512)}")
    A(f"s_and_b32 {skq}, {sc}, 3"); A(f"s_lshr_b32 {snb}, {sc}, 2")
    A("s_mov_b32 s38, 0x400000"); A("s_mov_b32 s39, 0x20000")
    A(f"s_cmp_eq_u32 {sw}, 0"); A("s_cbranch_scc1 L_helper")
    for reg,sz in ((16,0x400000),(8,0x8000000),(4,1024)):
        A(f"s_mov_b32 s{reg+2}, {sz:#x}"); A(f"s_mov_b32 s{reg+3}, 0x20000")
    A(f"s_sub_u32 {sw}, {sw}, 1")
    A("v_lshrrev_b32 v1, 4, v0"); A("v_and_b32 v2, 3, v0"); A("v_bfe_u32 v3, v0, 2, 2")
    A("v_and_b32 v6, 7, v0"); A("v_lshlrev_b32 v8, 1, v1"); A("v_xor_b32 v6, v6, v8"); A("v_lshlrev_b32 v6, 4, v6")
    A("v_lshrrev_b32 v7, 3, v0")
    A("v_lshl_add_u32 v9, v7, 13, v6")
    A("v_and_b32 v4, 15, v0"); A("v_xor_b32 v4, v4, v8"); A("v_lshlrev_b32 v4, 4, v4"); A("v_lshl_add_u32 v4, v1, 8, v4"); A("v_xor_b32 v5, 0x80, v4")
    A("v_and_b32 v10, 1, v1"); A("v_lshl_add_u32 v10, v2, 1, v10"); A("v_lshl_add_u32 v10, v10, 2, v3")
    A(f"s_lshl_b32 {sT0}, {skq}, 2"); A(f"s_add_u32 {sD}, {sT0}, {sw}")
    A(f"s_lshl_b32 {sT0}, {sD}, 6"); A(f"v_lshl_add_u32 {vOUT}, v10, 1, {sT0}")
    A(f"s_lshl_b32 {sB}, {sD}, 18"); A(f"s_lshl_b32 {sT0}, {sg}, 10"); A(f"s_add_u32 {sB}, {sB}, {sT0}"); A(f"s_lshl_b32 {sC}, {snb}, 7"); A(f"s_add_u32 {sB}, {sB}, {sC}")
    A(f"s_lshl_b32 {sA}, {sg}, 24"); A(f"s_lshl_b32 {sT0}, {sc}, 15"); A(f"s_add_u32 {sA}, {sA}, {sT0}"); A(f"s_lshl_b32 {sT0}, {sw}, 13"); A(f"s_add_u32 {sA}, {sA}, {sT0}"); A(f"s_add_u32 {sA}, {sA}, {61440*256}")
    A("s_waitcnt lgkmcnt(0)")
    A(f"buffer_load_ushort v11, {vOUT}, {sX}, 0 offen")
    wtile(sQ,sB,L_WQ,8192,4,"v9")
    kvload(sK,L_K,0); kvload(sK,L_K,1)
    stamp("issued0")
    A("s_branch L_setup")
    helper()
    A("L_setup:")
    for reg,sz in ((12,0x8000000),(20,0x400000),(32,1024)):
        A(f"s_mov_b32 s{reg+2}, {sz:#x}"); A(f"s_mov_b32 s{reg+3}, 0x20000")
    A("s_add_u32 s36, s36, 0x1fffff"); A("s_addc_u32 s37, s37, 0"); A("s_and_b32 s36, s36, 0xffe00000")
    A(f"s_load_dword {stag}, s[36:37], {WS_E:#x}")
    A("s_mov_b64 s[40:41], s[36:37]"); A(f"s_add_u32 s44, s36, {WS_SLOW:#x}"); A("s_addc_u32 s45, s37, 0"); A("s_mov_b32 s43, 0x20000"); A("s_mov_b32 s47, 0x20000")
    A(f"s_bitcmp1_b32 {snb}, 0"); A("s_cselect_b64 s[24:25], s[50:51], s[48:49]")
    A(f"s_cmp_eq_u32 {sg}, 7"); A(f"s_cselect_b32 s26, 0, {512*3584:#x}"); A(f"s_cselect_b32 s30, 0, {1792*1024:#x}")
    A("s_mov_b32 s27, 0x20000"); A("s_mov_b32 s31, 0x20000")
    A("s_mov_b32 s68, 0"); A("s_mov_b32 s69, -1"); A(f"s_mov_b32 {sspin}, {SPIN}")
    A("v_and_b32 v12, 15, v0")
    A(f"v_mov_b32 v13, {OOB:#x}")
    A("v_cmp_gt_u32 s[60:61], 16, v0"); A("v_cmp_gt_u32 s[62:63], 32, v0")
    A("v_and_b32 v14, 1, v0"); A("v_lshlrev_b32 v14, 4, v14"); A("v_mov_b32 v15, 0xffff"); A("v_lshlrev_b32 v14, v14, v15")
    A("v_lshrrev_b32 v15, 1, v12")
    for k in range(8):
        A(f"v_cmp_eq_u32 vcc, {k}, v15"); A(f"v_cndmask_b32 v{MASK+k}, 0, v14, vcc")
    for k in range(4):
        A(f"v_mov_b32 v{ONES+k}, 0x3f803f80"); A(f"v_or_b32 v{SEL+k}, v{MASK+k}, v{MASK+4+k}"); A(f"v_and_b32 v{SEL+k}, 0x3f803f80, v{SEL+k}")
    A("v_lshrrev_b32 v15, 3, v12"); A("v_sub_u32 v15, v1, v15")
    for u in range(2):
        A(f"v_cmp_eq_u32 vcc, {2*u}, v15")
        for k in range(4): A(f"v_cndmask_b32 v{SELU+4*u+k}, 0, v{SEL+k}, vcc")
    for k in range(16): A(f"v_mov_b32 v{PB+k}, 0")
    A(f"s_mul_i32 {sB}, {sg}, {FA_SZ:#x}"); A(f"s_add_u32 {sB}, {sB}, {WS_FA:#x}")
    A(f"s_lshl_b32 {sC}, {sg}, 13"); A(f"s_add_u32 {sC}, {sC}, {WS_FB:#x}")
    A("v_lshrrev_b32 v14, 5, v0"); A("v_lshlrev_b32 v14, 14, v14"); A("v_bfe_u32 v15, v0, 2, 3"); A("v_lshl_add_u32 v14, v15, 10, v14"); A("v_lshl_add_u32 v14, v2, 4, v14")
    A(f"s_lshl_b32 s48, {sD}, 6"); A(f"v_add_u32 {vSG}, s48, v14")
    A(f"s_lshr_b32 s48, {sg}, 1"); A("s_lshl_b32 s48, s48, 14"); A(f"s_and_b32 s49, {sg}, 1"); A("s_lshl_b32 s49, s49, 2"); A(f"s_add_u32 s49, s49, {skq}"); A("s_lshl_b32 s49, s49, 10"); A("s_add_u32 s48, s48, s49")
    A(f"s_lshl_b32 s49, {snb}, 7"); A("s_add_u32 s48, s48, s49"); A(f"s_lshl_b32 s49, {sw}, 5"); A("s_add_u32 s48, s48, s49")
    A(f"v_lshl_add_u32 v14, v12, 1, s48"); A(f"v_cndmask_b32 {vSP}, v13, v14, s[60:61]")
    A(f"s_and_b32 s48, {snb}, 1"); A("s_lshl_b32 s48, s48, 2"); A(f"s_add_u32 s48, s48, {sw}"); A("s_lshl_b32 s48, s48, 9")
    A(f"s_lshl_b32 s49, {skq}, 2"); A(f"s_lshr_b32 s50, {snb}, 1"); A("s_add_u32 s49, s49, s50"); A("s_lshl_b32 s49, s49, 4"); A("s_add_u32 s48, s48, s49")
    A("v_lshrrev_b32 v14, 3, v12"); A("v_lshlrev_b32 v14, 8, v14"); A("v_and_b32 v15, 7, v0"); A("v_lshl_add_u32 v14, v15, 1, v14"); A("v_add_u32 v14, s48, v14")
    A(f"s_add_u32 s49, {sB}, {FA_Q:#x}"); A(f"v_add_u32 v15, s49, v14"); A(f"v_add_u32 v14, {sC}, v14")
    A("v_cndmask_b32 v14, v13, v14, s[62:63]"); A(f"v_cndmask_b32 {vQP}, v14, v15, s[60:61]")
    A(f"s_add_u32 s48, {sC}, {FB_ST:#x}"); A(f"v_lshl_add_u32 {vST}, v12, 3, s48")
    A(f"s_lshl_b32 s49, {skq}, 7"); A(f"s_add_u32 s49, s49, {sC}"); A(f"s_add_u32 s49, s49, {FB_LAM:#x}"); A(f"v_lshl_add_u32 {vLG}, v12, 3, s49")
    A(f"s_lshl_b32 s49, {sD}, 3"); A("s_add_u32 s48, s48, s49"); A(f"s_cmp_eq_u32 {snb}, 0"); A(f"s_cselect_b32 s48, s48, {OOB:#x}")
    A("v_lshl_add_u32 v14, v1, 2, s48"); A("v_and_b32 v15, 0x2f, v0"); A("v_cmp_eq_u32 vcc, 0, v15"); A(f"v_cndmask_b32 {vSTP}, v13, v14, vcc")
    A(f"s_lshl_b32 s48, {sw}, 13"); A(f"s_lshl_b32 s49, {sc}, 8"); A("s_add_u32 s48, s48, s49"); A(f"s_add_u32 s48, s48, {sB}"); A(f"v_lshl_add_u32 {vAP}, v0, 2, s48")
    A(f"s_lshl_b32 s48, {skq}, 2"); A(f"s_lshr_b32 s49, {sc}, 3"); A("s_add_u32 s48, s48, s49"); A("s_lshl_b32 s48, s48, 1"); A(f"s_and_b32 s49, {snb}, 1"); A("s_add_u32 s48, s48, s49"); A("s_lshl_b32 s48, s48, 2")
    A(f"s_lshl_b32 s49, {sw}, 7"); A("s_add_u32 s48, s48, s49"); A(f"s_add_u32 s48, s48, {sC}"); A(f"s_add_u32 s48, s48, {FB_LAM:#x}")
    A("v_mov_b32 v14, s48"); A("v_cmp_eq_u32 vcc, 0, v0"); A(f"v_cndmask_b32 {vLP}, v13, v14, vcc")
    A(f"s_lshl_b32 s48, {skq}, 13"); A(f"s_lshl_b32 s49, {sw}, 6"); A("s_add_u32 s48, s48, s49"); A(f"s_add_u32 s48, s48, {sB}")
    A("v_lshrrev_b32 v14, 2, v0"); A("v_lshlrev_b32 v14, 8, v14"); A("v_lshl_add_u32 v14, v2, 4, v14"); A(f"v_add_u32 {vAG}, s48, v14")
    A(f"s_lshl_b32 s48, {snb}, 10"); A(f"s_lshl_b32 s49, {sw}, 8"); A("s_add_u32 s48, s48, s49"); A(f"s_lshl_b32 s49, {skq}, 2"); A("s_add_u32 s48, s48, s49"); A(f"s_add_u32 s48, s48, {sB}"); A(f"s_add_u32 s48, s48, {FA_UP:#x}")
    A("v_lshl_add_u32 v14, v12, 4, s48"); A("v_lshl_add_u32 v14, v1, 14, v14"); A(f"v_cndmask_b32 {vUP}, v13, v14, s[62:63]")
    A(f"s_lshl_b32 s48, {skq}, 11"); A(f"s_add_u32 s48, s48, {sB}"); A(f"s_add_u32 s48, s48, {FA_UP:#x}"); A(f"v_lshl_add_u32 {vUG}, v0, 4, s48")
    A("v_and_b32 v14, 1, v2"); A("v_and_b32 v15, 1, v1"); A("v_lshl_add_u32 v14, v14, 1, v15"); A("v_lshlrev_b32 v14, 4, v14"); A("v_lshrrev_b32 v15, 1, v2"); A("v_lshl_add_u32 v14, v15, 3, v14"); A("v_lshl_add_u32 v14, v3, 1, v14")
    A(f"s_lshl_b32 s48, {sw}, 6"); A(f"v_add_u32 {vXW}, s48, v14")
    A(f"v_lshlrev_b32 {vOR}, 4, v1")
    A("v_cmp_eq_u32 vcc, 1, v3"); A(f"v_add_u32 v14, 0x100, {vOR}"); A(f"v_cndmask_b32 {vXR}, {vOR}, v14, vcc"); A(f"v_add_u32 {vXRW}, s48, {vXR}")
    A(f"s_mul_i32 s48, {sw}, 2304"); A("v_mul_u32_u24 v14, 272, v1"); A("v_lshl_add_u32 v14, v12, 4, v14"); A(f"v_add_u32 {vOW}, s48, v14")
    A("v_bfe_u32 v14, v0, 3, 1"); A("v_mul_u32_u24 v14, 1152, v14"); A("v_bfe_u32 v15, v0, 1, 2"); A("v_mul_u32_u24 v15, 272, v15"); A("v_add_u32 v14, v14, v15")
    A("v_lshl_add_u32 v14, v1, 6, v14"); A("v_and_b32 v15, 1, v0"); A("v_lshl_add_u32 v14, v15, 3, v14"); A(f"s_lshl_b32 s48, {sw}, 4"); A(f"v_add_u32 {vORD}, s48, v14")
    A(f"s_lshl_b32 s48, {sw}, 3"); A("v_lshl_add_u32 v14, v0, 5, s48"); A("v_lshlrev_b32 v15, 3, v0"); A(f"v_add_u32 v15, {L_DUM-L_ML}, v15"); A("v_cmp_gt_u32 vcc, 4, v0"); A(f"v_cndmask_b32 {vMW}, v15, v14, vcc")
    A(f"s_lshl_b32 s48, {sw}, 5"); A(f"v_lshl_add_u32 {vMR}, v2, 3, s48")
    A("v_lshrrev_b32 v14, 2, v0"); A("v_bfe_u32 v15, v0, 3, 2"); A(f"v_xor_b32 v15, {sw}, v15"); A("v_lshlrev_b32 v15, 5, v15"); A("v_lshl_add_u32 v14, v14, 7, v15"); A(f"v_lshl_add_u32 {vWR}, v2, 3, v14")
    A("v_lshlrev_b32 v14, 2, v0"); A(f"ds_write_b32 v14, v{ONES} offset:{L_ONES}")
    A("s_waitcnt vmcnt(8)")
    stamp("wq")
    kvload(sV,L_V,0)
    A(f"ds_write_b16 {vXW}, v11 offset:{L_XB}")
    A(f"v_lshlrev_b32 {vCAR}, 16, v11")
    A(f"v_cmp_gt_u32 vcc, 32, v0"); A(f"v_cndmask_b32 {vOUT}, v13, {vOUT}, vcc")
    A("s_waitcnt lgkmcnt(0)")
    A(f"s_add_u32 {stag}, {stag}, {TAGK:#x}"); A(f"s_and_b32 {stag}, {stag}, 0xfffffff8")
    A("s_barrier")
    stamp("B1")
    A(f"v_mov_b32 v14, {L_MODE}"); A("ds_read_b32 v15, v14")
    wfrags(WQ,L_WQ)
    A("s_waitcnt lgkmcnt(8)")
    A("v_readfirstlane_b32 s48, v15")
    A("s_cmp_eq_u32 s48, 1"); A("s_cselect_b32 s42, 0x200000, 0"); A("s_cselect_b32 s46, 0, 0x200000")
    A("s_cselect_b64 s[4:5], s[40:41], s[44:45]"); A("s_mov_b32 s6, 0x200000")

    def gemv_tail(W,kind,it):
        X=T
        if kind!="O":
            A(f"ds_read_b128 {q(X+16)}, {vXRW} offset:{L_XB}")
            for s in range(4): A(f"ds_read_b128 {q(X+4*s)}, {vXR} offset:{L_XB+64*s}")
            A(f"s_mov_b32 {sT0}, {0x80*(2*it+(kind=='U'))}")
            A(f"s_mov_b32 {sT1}, {it*(0x1000 if kind=='Q' else 0x2000)}")
            A("s_waitcnt lgkmcnt(4)")
            A(f"v_mfma_f32_16x16x32_bf16 {q(X+24)}, {q(X+16)}, {q(X+16)}, 0")
        else:
            for s in range(4): A(f"ds_read_b128 {q(X+4*s)}, {vOR} offset:{L_OB+64*s}")
        for s in range(4):
            A(f"s_waitcnt lgkmcnt({3-s})")
            A(f"v_mfma_f32_16x16x32_bf16 {q(X+20)}, {q(X+4*s)}, {q(W+4*s)}, {'0' if s==0 else q(X+20)}")
        if kind!="O": fstore("buffer_store_dword",f"v{X+24}",vSTP,sT0)
        if kind=="Q":
            A(f"v_cvt_pk_bf16_f32 v{X}, v{X+20}, v{X+20}")
            fstore("buffer_store_short",f"v{X}",vQP,sT1)
        if kind=="U":
            fstore("buffer_store_dword",f"v{X+20}",vUP,sT1)
    def spublish(reg,hop,measure):
        A(f"buffer_store_short v{reg}, {vSP}, {sW}, {sT2} offen sc1")
        A(f"buffer_store_short v{reg}, {vSP}, {sW}, {sT3} offen sc1")
    def sprep(hop):
        A(f"s_mov_b32 {sT2}, {hop*0x10000:#x}"); A(f"s_mov_b32 {sT3}, {hop*0x10000+0x2000:#x}")
    def sack(hop):
        A("s_waitcnt vmcnt(1)"); A("s_memtime s[48:49]")
        A("s_waitcnt vmcnt(0)"); A("s_memtime s[50:51]")
        A("s_waitcnt lgkmcnt(0)")
        A("s_sub_u32 s48, s50, s48"); A("s_cmp_gt_u32 s48, 110"); A(f"s_cselect_b32 {sT2}, {sT2}, {sT3}")
        A(f"s_add_u32 {sT3}, {sT2}, 0x8000")
    def sg_head(lbl):
        X=T
        A(f"{lbl}:")
        A(f"buffer_load_dwordx4 {q(X)}, {vSG}, {sW}, {sT2} offen sc1")
        A(f"buffer_load_dwordx4 {q(X+4)}, {vSG}, {sW}, {sT3} offen sc1")
        spin()
        A("s_waitcnt vmcnt(1)")
        A(f"v_mfma_f32_16x16x32_bf16 {q(X+8)}, {q(SEL)}, {q(X)}, 0")
        A("s_waitcnt vmcnt(0)")
        A(f"v_mfma_f32_16x16x32_bf16 {q(X+8)}, {q(SEL)}, {q(X+4)}, {q(X+8)}")
        rs4(X+14,X+12,X+13,X+8)
        A(f"v_cvt_pk_bf16_f32 v{X+12}, v{X+14}, v{X+14}")
        A(f"v_cmp_u_f32 vcc, v{X+14}, v{X+14}")
        A(f"v_lshlrev_b32 v{X+12}, 16, v{X+12}")
        A(f"v_add_f32 v{X+12}, v{X+12}, {vCAR}")
        A(f"v_cvt_pk_bf16_f32 v{X+12}, v{X+12}, v{X+12}")
        retry(lbl)
    def sg_share():
        X=T
        A(f"ds_write_b16 {vXW}, v{X+12} offset:{L_XB}")
        A(f"v_lshlrev_b32 {vCAR}, 16, v{X+12}")
        A("s_waitcnt lgkmcnt(0)")
        A("s_barrier")
    def stats_ops(S2,S1,mu,rstd):
        L=[]
        for c in R16:
            L.append(f"v_add_f32_dpp v{S2}, v{S2}, v{S2} "+dpp(c)); L.append(f"v_add_f32_dpp v{S1}, v{S1}, v{S1} "+dpp(c))
        L.append(f"v_mul_f32 v{mu}, 0x3b000000, v{S1}")
        L.append(f"v_mul_f32 v{S2}, 0x3b000000, v{S2}")
        L.append(f"v_fma_f32 v{S2}, -v{mu}, v{mu}, v{S2}")
        L.append(f"v_and_b32 v{S2}, 0x7fffffff, v{S2}")
        L.append(f"v_add_f32 v{S2}, 0x3727c5ac, v{S2}")
        L.append(f"v_rsq_f32 v{rstd}, v{S2}")
        return L
    def qk(QF,D):
        for s in range(4):
            for t in range(2):
                A(f"v_mfma_f32_16x16x32_bf16 {q(D+4*t)}, {q(KF+16*t+4*s)}, {q(QF+4*s)}, {'0' if s==0 else q(D+4*t)}")
    def rs8(u0,u1,t,D):
        for v in range(4): A(f"v_add_f32_dpp v{t+v}, v{D+v}, v{D+v} "+dpp("row_ror:8",0x3))
        for v in range(4): A(f"v_add_f32_dpp v{t+v}, v{D+4+v}, v{D+4+v} "+dpp("row_ror:8",0xc))
        A(f"v_add_f32_dpp {u0}, v{t}, v{t} "+dpp("row_shl:4",0x5))
        A(f"v_add_f32_dpp {u1}, v{t+1}, v{t+1} "+dpp("row_shl:4",0x5))
        A(f"v_add_f32_dpp {u0}, v{t+2}, v{t+2} "+dpp("row_shr:4",0xa))
        A(f"v_add_f32_dpp {u1}, v{t+3}, v{t+3} "+dpp("row_shr:4",0xa))
    def att_gather(it):
        QF=T; ST=T+16; CS=T+20
        A(f"buffer_load_dwordx2 {d(ST)}, {vST}, {sWG}, 0 offen offset:{0x100*it} sc1")
        for s in range(4): A(f"buffer_load_dwordx4 {q(QF+4*s)}, {vQG}, {sWG}, {sT2} offen offset:{1024*s} sc1")
        if it==0:
            for s in range(4): A(f"buffer_load_dwordx4 {q(CS+4*s)}, {vQG}, {sWG}, {sC} offen offset:{1024*s} sc1")
    def att_scores(it,lbl,target):
        QF=T; ST=T+16; CS=T+20; D=T+36; t=T+44; U=T+48; mu=T+18; a=T+19
        if it==0:
            qk(CS,D); rs8(vCS0,vCS1,t,D)
        st=stats_ops(ST,ST+1,mu,a)
        st+= [f"v_mul_f32 v{a}, 0x3e0293ee, v{a}",
              f"v_mul_f32 v{mu}, v{mu}, v{a}",
              f"v_mul_f32 v{ST}, v{mu}, {vCS0}", f"v_mul_f32 v{ST+1}, v{mu}, {vCS1}"]
        k=0
        for s in range(4):
            if it: A(f"s_waitcnt vmcnt({3-s})")
            for tt in range(2):
                A(f"v_mfma_f32_16x16x32_bf16 {q(D+4*tt)}, {q(KF+16*tt+4*s)}, {q(QF+4*s)}, {'0' if s==0 else q(D+4*tt)}")
                for _ in range(2):
                    if k<len(st): A(st[k]); k+=1
        while k<len(st): A(st[k]); k+=1
        rs8(f"v{U}",f"v{U+1}",t,D)
        A(f"v_fma_f32 v{U}, v{U}, v{a}, -v{ST}"); A(f"v_fma_f32 v{U+1}, v{U+1}, v{a}, -v{ST+1}")
        m=T+50; tmp=T+51
        A(f"v_max_f32 v{m}, v{U}, v{U+1}")
        A(f"v_cmp_u_f32 vcc, v{U}, v{U+1}")
        retry(target)
        A(f"v_max_f32_dpp v{m}, v{m}, v{m} "+dpp("row_ror:4"))
        A(f"v_max_f32_dpp v{m}, v{m}, v{m} "+dpp("row_ror:8"))
        for sw_ in ("v_permlane16_swap_b32","v_permlane32_swap_b32"):
            A(f"v_mov_b32 v{tmp}, v{m}"); A(f"{sw_} v{m}, v{tmp}"); A(f"v_max_f32 v{m}, v{m}, v{tmp}")
        A(f"v_sub_f32 v{U}, v{U}, v{m}"); A(f"v_sub_f32 v{U+1}, v{U+1}, v{m}")
        A(f"v_exp_f32 v{U}, v{U}"); A(f"v_exp_f32 v{U+1}, v{U+1}")
        A(f"v_cvt_pk_bf16_f32 v{U}, v{U}, v{U+1}")
    def att_pv(it):
        U=T+48; m=T+50; ACC=T; LA=T+8; ML=T+12; O=T+16
        def pbmov(rho,kap):
            ctrl="quad_perm:[0,1,2,3]" if kap==rho else (f"row_shl:{4*(kap-rho)}" if kap>rho else f"row_shr:{4*(rho-kap)}")
            A(f"v_mov_b32_dpp v{PB+4*rho+kap}, v{U} "+dpp(ctrl,1<<rho))
        for kap in range(4): pbmov(0,kap)
        pbmov(1,0); pbmov(1,1)
        A(f"v_mfma_f32_16x16x32_bf16 {q(LA)}, {q(ONES)}, {q(PB)}, 0")
        pend=[(r,k) for r in range(1,4) for k in range(4)][2:]
        for rho in range(4):
            for u in range(2):
                A(f"v_mfma_f32_16x16x32_bf16 {q(ACC+4*u)}, {q(VF+4*(2*rho+u))}, {q(PB+4*rho)}, {'0' if rho==0 else q(ACC+4*u)}")
                for _ in range(2):
                    if pend: pbmov(*pend.pop(0))
                if rho==2 and u==0: A(f"ds_write2_b32 {vMW}, v{m}, v{LA} offset0:0 offset1:1")
        A(f"s_mov_b32 {sT0}, {it*0x200:#x}"); A(f"s_mov_b32 {sT1}, {it*0x8000:#x}")
        A("s_waitcnt lgkmcnt(0)"); A("s_barrier")
        A(f"ds_read_b64 {d(ML)}, {vMR} offset:{L_ML}")
        A(f"ds_write_b128 {vOW}, {q(ACC)} offset:{L_OBUF}")
        A(f"ds_write_b128 {vOW}, {q(ACC+4)} offset:{L_OBUF+1152}")
        M=T+14; al=T+15
        A("s_waitcnt lgkmcnt(2)")
        A(f"v_max_f32_dpp v{M}, v{ML}, v{ML} "+dpp(R16[0]))
        A(f"v_max_f32_dpp v{M}, v{M}, v{M} "+dpp(R16[1]))
        A(f"v_sub_f32 v{al}, v{ML}, v{M}"); A(f"v_exp_f32 v{al}, v{al}")
        A("s_waitcnt lgkmcnt(0)"); A("s_barrier")
        for s in range(4): A(f"ds_read_b64 {d(O+2*s)}, {vORD} offset:{L_OBUF+2304*s}")
        A(f"v_mul_f32 v{ML+1}, v{al}, v{ML+1}")
        A(f"v_add_f32_dpp v{ML+1}, v{ML+1}, v{ML+1} "+dpp(R16[0]))
        A(f"v_add_f32_dpp v{ML+1}, v{ML+1}, v{ML+1} "+dpp(R16[1]))
        A(f"v_rcp_f32 v{ML}, v{ML+1}"); A(f"v_log_f32 v{ML+1}, v{ML+1}")
        A(f"v_mul_f32 v{al}, v{al}, v{ML}"); A(f"v_add_f32 v{M}, v{M}, v{ML+1}")
        fstore("buffer_store_dword",f"v{M}",vLP,sT0)
        for s in range(4):
            A(f"s_waitcnt lgkmcnt({3-s})")
            for e in range(2):
                A(f"{'v_mul_f32_dpp' if s==0 else 'v_fmac_f32_dpp'} v{ACC+e}, v{al}, v{O+2*s+e} "+dpp(f"quad_perm:[{s},{s},{s},{s}]"))
        A(f"v_cvt_pk_bf16_f32 v{ACC}, v{ACC}, v{ACC+1}")
        fstore("buffer_store_dword",f"v{ACC}",vAP,sT1)
    def wo_stage(it,lbl):
        X=T; LM=T+8; D=T+12; M=T+10; wv=T+11; ACC=T+28; U=T+32; Ls=T+35
        A(f"s_mov_b32 {sT0}, {it*0x8000:#x}"); A(f"s_mov_b32 {sT1}, {it*0x8000+0x1000:#x}")
        A(f"{lbl}:")
        A(f"buffer_load_dwordx2 {d(LM)}, {vLG}, {sWG}, 0 offen offset:{0x200*it} sc1")
        A(f"buffer_load_dwordx4 {q(X)}, {vAG}, {sWG}, {sT0} offen sc1")
        A(f"buffer_load_dwordx4 {q(X+4)}, {vAG}, {sWG}, {sT1} offen sc1")
        spin()
        A("s_waitcnt vmcnt(2)")
        A(f"v_max_f32 v{M}, v{LM}, v{LM+1}")
        A(f"v_cndmask_b32 v{wv}, v{LM}, v{LM+1}, {sHI}")
        A("s_waitcnt vmcnt(1)")
        for k in range(4):
            A(f"v_max_f32_dpp v{M}, v{M}, v{M} "+dpp(R16[k]))
            if k==2: A("s_waitcnt vmcnt(0)")
            A(f"v_mfma_f32_16x16x32_bf16 {q(D+4*k)}, {q(SELU+4*(k&1))}, {q(X+4*(k>>1))}, 0")
        A(f"v_sub_f32 v{wv}, v{wv}, v{M}"); A(f"v_exp_f32 v{wv}, v{wv}")
        sprep(2*it)
        for k in range(4):
            for r in range(4):
                A(f"{'v_mul_f32_dpp' if k==0 else 'v_fmac_f32_dpp'} v{ACC+r}, v{wv}, v{D+4*k+r} "+dpp(f"quad_perm:[{k},{k},{k},{k}]"))
        A(f"v_add_f32_dpp v{Ls}, v{wv}, v{wv} "+dpp(R16[0]))
        rs4(U,U+1,U+2,ACC)
        A(f"v_mov_b32 v{U+1}, v{U}")
        A(f"v_add_f32_dpp v{Ls}, v{Ls}, v{Ls} "+dpp(R16[1]))
        A(f"v_permlane32_swap_b32 v{U}, v{U+1}"); A(f"v_add_f32 v{U}, v{U}, v{U+1}")
        A(f"v_cvt_pk_bf16_f32 v{U+1}, v{U}, v{U}")
        A(f"v_cmp_u_f32 vcc, v{U}, v{U}")
        retry(lbl)
        A(f"ds_write_b16 {vXW}, v{U+1} offset:{L_OB}")
        A(f"v_add_f32_dpp v{Ls}, v{Ls}, v{Ls} "+dpp(R16[2]))
        A(f"v_add_f32_dpp v{Ls}, v{Ls}, v{Ls} "+dpp(R16[3]))
        A(f"v_mov_b32 v{U}, v{Ls}")
        A("s_waitcnt lgkmcnt(0)"); A("s_barrier")
        A(f"v_permlane32_swap_b32 v{Ls}, v{U}"); A(f"v_add_f32 v{Ls}, v{Ls}, v{U}"); A(f"v_rcp_f32 v{Ls}, v{Ls}")
        gemv_tail(WO,"O",it)
        A(f"v_mul_f32 v{T+20}, v{T+20}, v{Ls}"); A(f"v_cvt_pk_bf16_f32 v{T+20}, v{T+20}, v{T+20}")
        spublish(T+20,2*it,True)
    def down_stage(it,lbl):
        G=T; Uq=T+4; ST=T+8; mu=T+10; rs=T+11; CS=T+12; AA=T+20; D=T+28
        A(f"s_mov_b32 {sT0}, {it*0x2000:#x}"); A(f"s_mov_b32 {sT1}, 0x4000")
        A(f"{lbl}:")
        A(f"buffer_load_dwordx2 {d(ST)}, {vST}, {sWG}, 0 offen offset:{0x100*it+0x80} sc1")
        A(f"buffer_load_dwordx4 {q(G)}, {vUG}, {sWG}, {sT0} offen sc1")
        A(f"buffer_load_dwordx4 {q(Uq)}, {vUG}, {sWG}, {sT0} offen offset:1024 sc1")
        ex=0
        if it==0:
            A(f"buffer_load_dwordx4 {q(CS)}, {vUG}, {sWG}, {sT1} offen sc1")
            A(f"buffer_load_dwordx4 {q(CS+4)}, {vUG}, {sWG}, {sT1} offen offset:1024 sc1")
            ex=2
        spin()
        st=stats_ops(ST,ST+1,mu,rs)
        A(f"s_waitcnt vmcnt({2+ex})")
        A(st[0]); A(st[1]); A(f"s_waitcnt vmcnt({1+ex})")
        A(st[2]); A(st[3]); A(f"v_add_f32 v{G}, v{G}, v{G+1}")
        A(st[4]); A(st[5]); A(f"v_add_f32 v{G+2}, v{G+2}, v{G+3}")
        A(st[6]); A(st[7]); A(f"s_waitcnt vmcnt({ex})")
        for x in st[8:]: A(x)
        A(f"v_add_f32 v{G}, v{G}, v{G+2}")
        A(f"v_add_f32 v{Uq}, v{Uq}, v{Uq+1}"); A(f"v_add_f32 v{Uq+2}, v{Uq+2}, v{Uq+3}")
        if it==0:
            A("s_waitcnt vmcnt(0)")
            for b,dst in ((CS,vCSG),(CS+4,vCSU)):
                A(f"v_add_f32 v{b}, v{b}, v{b+1}"); A(f"v_add_f32 v{b+2}, v{b+2}, v{b+3}"); A(f"v_add_f32 {dst}, v{b}, v{b+2}")
        A(f"v_fma_f32 v{G}, -v{mu}, {vCSG}, v{G}")
        A(f"v_mul_f32 v{G}, v{G}, v{rs}")
        A(f"v_mul_f32 v{G+1}, 0xbfb8aa3b, v{G}")
        A(f"v_exp_f32 v{G+1}, v{G+1}")
        A(f"v_add_f32 v{Uq}, v{Uq}, v{Uq+2}")
        A(f"v_add_f32 v{G+1}, 1.0, v{G+1}")
        A(f"v_rcp_f32 v{G+1}, v{G+1}")
        A(f"v_fma_f32 v{Uq}, -v{mu}, {vCSU}, v{Uq}")
        A(f"v_mul_f32 v{Uq}, v{Uq}, v{rs}")
        A(f"v_mul_f32 v{G}, v{G}, v{Uq}")
        A(f"v_mul_f32 v{G}, v{G}, v{G+1}")
        A(f"v_cvt_pk_bf16_f32 v{G+1}, v{G}, v{G}")
        A(f"v_cmp_u_f32 vcc, v{G}, v{G}")
        for k in range(4): A(f"v_and_b32 v{AA+k}, v{G+1}, v{MASK+k}")
        retry(lbl)
        A(f"v_and_b32 v{AA+4}, v{G+1}, v{MASK+4}")
        A(f"v_mfma_f32_16x16x32_bf16 {q(D)}, {q(AA)}, {q(W2)}, 0")
        for k in range(5,8): A(f"v_and_b32 v{AA+k}, v{G+1}, v{MASK+k}")
        sprep(2*it+1)
        A(f"v_mfma_f32_16x16x32_bf16 {q(D)}, {q(AA+4)}, {q(W2+4)}, {q(D)}")
        A(f"v_add_f32 v{D}, v{D}, v{D+1}"); A(f"v_add_f32 v{D+2}, v{D+2}, v{D+3}"); A(f"v_add_f32 v{D}, v{D}, v{D+2}")
        for sw_ in ("v_permlane16_swap_b32","v_permlane32_swap_b32"):
            A(f"v_mov_b32 v{D+1}, v{D}"); A(f"{sw_} v{D}, v{D+1}"); A(f"v_add_f32 v{D}, v{D}, v{D+1}")
        A(f"v_cvt_pk_bf16_f32 v{D}, v{D}, v{D}")
        spublish(D,2*it+1,True)

    gemv_tail(WQ,"Q",0)
    stamp("Qpub0")
    A(f"v_cmp_gt_u32 vcc, 16, v0"); A(f"v_cndmask_b32 {vQP}, v13, {vQP}, vcc")
    A(f"v_add_u32 {vMW}, {L_ML}, {vMW}")
    A(f"s_add_u32 {sT2}, {sB}, {FA_Q:#x}")
    A("s_waitcnt vmcnt(12)")
    att_gather(0)
    kvload(sV,L_V,1)
    A("v_lshl_add_u32 v9, v7, 10, v6")
    A("v_mul_u32_u24 v10, 3584, v7"); A("v_add_u32 v10, v10, v6")
    A("v_and_b32 v14, 7, v0"); A("v_lshlrev_b32 v14, 1, v14"); A("v_xor_b32 v14, v14, v1"); A("v_lshlrev_b32 v14, 4, v14"); A("v_lshl_add_u32 v14, v12, 8, v14")
    A(f"s_lshl_b32 s48, {sw}, 13"); A(f"s_add_u32 s48, s48, {L_K:#x}"); A("v_add_u32 v14, s48, v14")
    A(f"s_lshl_b32 s49, {sg}, 4"); A(f"s_add_u32 s49, s49, {sD}"); A("s_lshl_b32 s50, s49, 15"); A(f"s_lshl_b32 s51, {snb}, 7"); A("s_add_u32 s50, s50, s51")
    A("s_waitcnt vmcnt(21)")
    stamp("K")
    wtile(sO,"s50",L_WO,1024,4,"v9")
    for s in range(4):
        if s: A(f"v_xor_b32 v15, {64*s}, v14")
        for t in range(2): A(f"ds_read_b128 {q(KF+16*t+4*s)}, v{15 if s else 14} offset:{4096*t}")
    A("v_lshrrev_b32 v14, 2, v0"); A("v_and_b32 v15, 7, v14"); A("v_lshlrev_b32 v15, 5, v15"); A("v_lshl_add_u32 v14, v14, 8, v15"); A("v_lshl_add_u32 v14, v2, 3, v14")
    A(f"s_add_u32 s48, s48, {L_V-L_K:#x}"); A("v_add_u32 v8, s48, v14")
    A(f"s_mul_i32 s50, {sD}, {32*3584}"); A(f"s_lshl_b32 s48, {sg}, 9"); A("s_add_u32 s50, s50, s48"); A(f"s_lshr_b32 s48, {snb}, 1"); A("s_lshl_b32 s48, s48, 7"); A("s_add_u32 s50, s50, s48")
    A("s_lshl_b32 s49, s49, 14"); A("s_add_u32 s49, s49, s51")
    A("s_waitcnt vmcnt(8)")
    stamp("qg0")
    A("v_and_b32 v14, 7, v0"); A("v_lshlrev_b32 v14, 7, v14"); A(f"v_add_u32 v4, {WS_GR:#x}, v14")
    A(f"buffer_load_dword v11, v4, {sW}, 0 offen sc1")
    wtile(sU,"s50",L_WU,3584,4,"v10")
    wtile(s2,"s49",L_W2,1024,2,"v9")
    A("s_waitcnt lgkmcnt(0)")
    A("L_att0:")
    att_scores(0,"L_a0","L_att0_again")
    A("s_waitcnt vmcnt(11)")
    stamp("V")
    for e in range(8):
        if e: A(f"v_xor_b32 v15, {32*e}, v8")
        for hh in range(2): A(f"ds_read_b64_tr_b16 {d(VF+4*e+2*hh)}, v{15 if e else 8} offset:{4096*hh}")
    A("s_waitcnt lgkmcnt(0)")
    att_pv(0)
    stamp("Apub0")
    A("s_waitcnt vmcnt(0)")
    A("L_grchk:")
    A(f"v_cmp_ne_u32 vcc, {stag}, v11"); A("s_cbranch_vccnz L_gr_again")
    A("s_barrier")
    stamp("all")
    wfrags(WO,L_WO)
    for it in range(2):
        wo_stage(it,f"L_wo{it}")
        if it==0:
            wfrags(WU,L_WU)
            A("v_lshl_add_u32 v14, v1, 4, v3"); A("v_lshlrev_b32 v14, 7, v14"); A("v_lshrrev_b32 v15, 1, v3"); A(f"v_xor_b32 v15, {sw}, v15"); A("v_lshl_add_u32 v14, v15, 5, v14"); A("v_lshl_add_u32 v14, v2, 3, v14"); A("v_xor_b32 v15, 64, v14")
            for t in range(2):
                for hh in range(2): A(f"ds_read_b64_tr_b16 {d(W2+4*t+2*hh)}, v{14+hh} offset:{L_W2+(8*t+4*hh)*128}")
        stamp(f"WOpub{it}")
        sack(2*it)
        sg_head(f"L_su{it}"); sg_share()
        gemv_tail(WU,"U",it)
        stamp(f"Upub{it}")
        if it==0:
            A(f"v_cmp_gt_u32 vcc, 16, v0"); A(f"v_cndmask_b32 {vUP}, v13, {vUP}, vcc")
        A("s_waitcnt vmcnt(0)")
        down_stage(it,f"L_dn{it}")
        stamp(f"Dpub{it}")
        if it==0:
            sack(1)
            sg_head("L_sq1"); sg_share()
            gemv_tail(WQ,"Q",1)
            A(f"s_add_u32 {sT2}, {sB}, {FA_Q+0x1000:#x}")
            A("s_waitcnt vmcnt(0)")
            A("L_att1:")
            att_gather(1); spin()
            att_scores(1,"L_a1","L_att1")
            att_pv(1)
            A("s_waitcnt vmcnt(0)")
    A(f"s_xor_b32 s48, {snb}, {sw}"); A(f"s_or_b32 s48, s48, {sg}"); A("s_cbranch_scc1 L_fin")
    sack(3)
    sg_head("L_sf")
    A("L_out:")
    A(f"buffer_store_short v{T+12}, {vOUT}, {sOUT}, 0 offen")
    A(f"s_cmp_eq_u32 {sc}, 0"); A("s_cbranch_scc0 L_fin")
    A(f"v_mov_b32 v14, {WS_E:#x}"); A(f"v_mov_b32 v15, {stag}")
    A(f"buffer_store_dword v15, v14, {sW}, 0 offen sc1")
    A("L_fin:")
    if stamps:
        stamp("end"); dump(sw)
    A("L_end:"); A("s_endpgm")
    A("L_att0_again:"); att_gather(0); spin(); A("s_waitcnt vmcnt(0)"); A("s_branch L_att0")
    A("L_gr_again:"); A(f"buffer_load_dword v11, v4, {sW}, 0 offen sc1"); spin(); A("s_waitcnt vmcnt(0)"); A("s_branch L_grchk")
    A("L_giveup:")
    A("s_waitcnt vmcnt(0)")
    if stamps: A("s_or_b32 s3, s3, 0x100")
    A(f"s_xor_b32 s48, {snb}, {sw}"); A(f"s_or_b32 s48, s48, {sg}"); A("s_cbranch_scc1 L_fin")
    A(f"v_mov_b32 v{T+12}, -1"); A("s_branch L_out")
    helper_slow()
    A("L_codeend:")
    main_names=list(names)
    txt=HEADER+f"; @launch grid=(256,1,1) block=(320,1,1) lds={LDS_BYTES}\n"
    txt+=f""".amdgcn_target "amdgcn-amd-amdhsa--gfx950"
.text
.globl {NAME}_kernel
.p2align 8
.type {NAME}_kernel,@function
{NAME}_kernel:
"""+A.text()+f""".section .rodata,"a"
.p2align 6
.amdhsa_kernel {NAME}_kernel
  .amdhsa_next_free_vgpr 256
  .amdhsa_next_free_sgpr 102
  .amdhsa_accum_offset 256
  .amdhsa_group_segment_fixed_size 0
  .amdhsa_kernarg_size 96
  .amdhsa_user_sgpr_count 2
  .amdhsa_user_sgpr_kernarg_segment_ptr 1
  .amdhsa_system_sgpr_workgroup_id_x 1
  .amdhsa_float_denorm_mode_32 3
.end_amdhsa_kernel
"""
    return txt, main_names
if __name__=="__main__":
    txt,names=gen(stamps=False)
    open(sys.argv[1] if len(sys.argv)>1 else "cdna_kernels/"+NAME+".s","w").write(txt)
```

```python
import re
TRANS=("v_exp_f32","v_log_f32","v_rcp_f32","v_rsq_f32","v_sqrt_f32")
def split_ops(s):
    out=[];d=0;cur=""
    for ch in s:
        if ch=="[":d+=1
        if ch=="]":d-=1
        if ch=="," and d==0: out.append(cur.strip());cur=""
        else: cur+=ch
    if cur.strip(): out.append(cur.strip())
    return out
def regs(op,kind):
    op=op.strip().split(" ")[0]
    op=op.replace("abs(","").replace(")","").replace("|","").lstrip("-")
    m=re.fullmatch(kind+r"(\d+)",op)
    if m: return {int(m.group(1))}
    m=re.fullmatch(kind+r"\[(\d+):(\d+)\]",op)
    if m: return set(range(int(m.group(1)),int(m.group(2))+1))
    if kind=="s" and op=="vcc": return {"vcc"}
    if kind=="s" and op=="m0": return {"m0"}
    return set()
class Rec: pass
class Asm:
    def __init__(s):
        s.lines=[]; s.h=[]; s.nnop=0; s.timed=False
    def raw(s,t): s.lines.append(t)
    def label(s,n): s.lines.append(n+":")
    def flush(s): s.h=[]
    def parse(s,t):
        r=Rec(); p=t.split(None,1); op=p[0]; ops=split_ops(p[1]) if len(p)>1 else []
        r.op=op; r.vw=set(); r.vr=set(); r.sw=set(); r.sr=set(); r.ab=set(); r.c=set(); r.dotab=set()
        r.valu=op.startswith("v_") and not op.startswith("v_mfma"); r.mfma=op.startswith("v_mfma")
        r.vmem=op.startswith("buffer_") or op.startswith("global_"); r.ds=op.startswith("ds_")
        r.dpp=("_dpp" in op); r.perm=op.startswith("v_permlane"); r.trans=op.replace("_e32","").replace("_e64","") in TRANS
        r.salu=op.startswith("s_"); r.states=1; r.wide=set(); r.lds=(" lds" in t and r.vmem)
        V=lambda o:regs(o,"v"); S=lambda o:regs(o,"s")
        if op=="s_nop": r.states=int(ops[0])+1
        elif r.mfma:
            r.vw=V(ops[0]); r.ab=V(ops[1])|V(ops[2]); r.c=V(ops[3]); r.vr=r.ab|r.c
            r.lat = 8 if "16x16x32" in op else (10 if "16x16x4_f32" in op else 12)
        elif r.valu:
            if op.startswith("v_cmp") or op.startswith("v_readfirstlane") or op.startswith("v_readlane"):
                r.sw=S(ops[0]); src=ops[1:]
            elif r.perm:
                r.vw=V(ops[0])|V(ops[1]); src=ops
            else:
                r.vw=V(ops[0]); src=ops[1:]
                if op.startswith("v_fmac") or op.startswith("v_dot2c"): src=ops
            for o in src: r.vr|=V(o); r.sr|=S(o)
            if op.startswith("v_dot2"): r.dotab=V(ops[1])|V(ops[2])
        elif r.vmem:
            if "load" in op and not r.lds: r.vw=V(ops[0]); src=ops[1:]
            else: src=ops
            for o in src: r.vr|=V(o); r.sr|=S(o)
            if "store" in op and ("x4" in op or "x3" in op): r.wide=V(ops[0])
        elif r.ds:
            if op.startswith("ds_read"): r.vw=V(ops[0]); src=ops[1:]
            else: src=ops
            for o in src: r.vr|=V(o)
        elif r.salu and ops and not op.startswith("s_cmp") and not op.startswith("s_cbranch") and not op.startswith("s_waitcnt") and op not in("s_branch","s_barrier","s_setprio","s_endpgm","s_sleep"):
            r.sw=S(ops[0])
            for o in ops[1:]: r.sr|=S(o)
        return r
    def need(s,p,c):
        n=0
        if p.valu:
            if c.mfma and p.vw&c.vr: n=max(n,2)
            if (c.dpp or c.perm) and p.vw&c.vr: n=max(n,2)
            if p.trans and c.valu and not c.trans and p.vw&c.vr: n=max(n,1)
            if p.trans and (c.vmem or c.ds) and p.vw&c.vr: n=max(n,1)
            if (c.op.startswith("v_readfirstlane") or c.op.startswith("v_readlane")) and p.vw&c.vr: n=max(n,1)
            if c.valu and p.sw&c.sr: n=max(n,2)
            if c.vmem and p.sw&c.sr: n=max(n,5)
            if c.salu and p.sw&c.sr: n=max(n,1)
        if p.op.startswith("v_dot2") and p.vw&(c.vr|c.vw) and (c.valu or c.vmem or c.ds or c.mfma):
            if not (c.op==p.op and not p.vw&c.dotab): n=max(n,3)
        if p.mfma:
            if c.mfma:
                if p.vw&c.ab: n=max(n,p.lat)
                if p.vw&c.c and p.vw!=c.c: n=max(n,p.lat-2)
            elif (c.valu or c.vmem or c.ds) and p.vw&(c.vr|c.vw): n=max(n,p.lat)
            if c.valu and p.c&c.vw: n=max(n,3 if p.lat==8 else 7)
        if p.salu and "m0" in p.sw and c.lds: n=max(n,1)
        if p.wide and c.valu and p.wide&c.vw: n=max(n,2)
        if p.wide and (c.vmem or c.ds) and p.wide&c.vw: n=max(n,1)
        return n
    def states(s,i,c):
        t=0; lm=None; lc=None
        seq=s.h[i:]+[c]
        for k,r in enumerate(seq):
            if s.timed and r.mfma and r.lat==8:
                if lm is not None and k<len(seq)-1: t=max(t,lm+16)
                lm=t
            if k==len(seq)-1: break
            if r.valu and "vcc" in r.sw: lc=t
            dur=4*r.states
            if s.timed and r.op.startswith("s_cbranch"):
                if "vcc" in r.op and lc is not None: dur=max(dur,lc+28-t)
            t+=dur
        return t//4-1
    def __call__(s,t):
        for line in t.split("\n"):
            line=line.split(";")[0].strip()
            if not line: continue
            if line.endswith(":"): s.label(line[:-1]); continue
            c=s.parse(line); pad=0
            for i in range(len(s.h)):
                n=s.need(s.h[i],c)
                if n: pad=max(pad,n-s.states(i,c))
            if pad>0:
                s.lines.append(f"    s_nop {pad-1}"); s.h.append(s.parse(f"s_nop {pad-1}")); s.nnop+=pad
            s.lines.append("    "+line); s.h.append(c); s.h=s.h[-24:]
            if c.op in("s_branch","s_endpgm"): s.flush()
    def text(s): return "\n".join(s.lines)+"\n"
```

```python
import sys
from emit import Asm
NAME="interleave_layers__sliding_block_cached__glu_gated_swiglu__decode"
HEADER=open("cdna_kernels/"+NAME+".s.ref").read().split("; Override launch")[0]

WS_PR=0x1a0000; WS_FL=0x1c0000; WS_E=0x1c9000; WS_PF=0x1cc000; WS_F=0x200000; FSZ=0x20000; WS_SLOW=0x100000; WS_DBG=0x400000; WS_S1=0x80000
F_ATT=0; F_Q1=0x8000; F_U=0x9000; F_LAM=0xC000; F_ST=0xC800; F_Q0=0x10000; F_ST0=0x12000
OOB=0x3ff00000; TAGK=0x9E376001; NREP=16
L_WQ=0; L_WO=0x4000; L_WU=0x8000; L_W2=0xC000; L_XB=0xE000; L_ONES=0xE100; L_OB=0xE200; L_SYNC=0xE380; L_PB=0xE800; L_ZERO=0xE300; L_HB=0xE400; L_XU=0xE600
L_K=0x10000; L_V=0x18000; L_OBUF=0; L_QB=0x20000; LDS_BYTES=0x22000
pX,pK,pV,pQ,pO,_,p1,p3,p2,pOUT,_,pWS=[f"s[{i}:{i+1}]" for i in range(4,28,2)]
sL,sP,sW,sF="s[28:31]","s[32:35]","s[36:39]","s[40:43]"
sg,sc,skq,snb,sw,stag,sdbg,sspin,sT0,sT1,sN,sR,sA,sB,sC,sD="s52 s53 s54 s55 s56 s57 s58 s59 s60 s61 s62 s63 s64 s65 s66 s67".split()
sHI="s[68:69]"; STAMP0=70
sTG,sTF,sG1,sG2,sG3,sG0="s4","s5","s6","s7","s8","s9"
def q(b): return f"v[{b}:{b+3}]"
def d(b): return f"v[{b}:{b+1}]"
WQ,WO,WU,W2,KF,VF=16,32,48,64,72,104
SEL,SELU,MASK,ONES,PB=136,140,148,156,160
vPB=[f"v{160+k}" for k in range(4)]; vQR=[f"v{164+k}" for k in range(4)]; vPF0,vPF1,vAP4="v168","v169","v170"
SELT=64
(vSG,vSP,vQP,vL16,vST,vSTP,vAP,vLP,vAG,vLG,vUP,vUG,vXW,vXR,vOR,vPW,vPR,vHW,vHR,vCAR,vCS0,vCS1,vCSG,vCSU,vOUT,vWR,vNAN,vQG)=[f"v{i}" for i in range(176,204)]
vZ,vONE,vXS,vSG0,vSP0="v5","v6","v4","v10","v11"
T=204
SPIN=1<<16
MF="v_mfma_f32_16x16x32_bf16"

def gen1(stamps=False, opts=None):
    o=dict(nt="nt",ptnt="nt",D=24,qwait="ack",fwait="ack",fwaitD=2,swait3=9,swait="far",copies=4,early=1,mask=0)
    o.update(opts or {})
    A=Asm(); A.timed=o.get("timed",1); nt=o["nt"]; D=o["D"]
    names=[]; M=[""]
    def stamp(name):
        if o.get("pad") and name==o["pad"][1]: A("s_memrealtime s[72:73]")
        if not stamps: return
        if o.get("only") is not None:
            if name not in o["only"]: return
        elif name in ("WOpub1","Upub1","setup") or "." in name: return
        if name not in names: names.append(name)
        k=STAMP0+2*names.index(name); assert k+1<=101
        A(f"{'s_memtime' if o.get('cyc') else 's_memrealtime'} s[{k}:{k+1}]")
    def hstamp(k):
        if stamps: A(f"s_memrealtime s[{STAMP0+2*k}:{STAMP0+2*k+1}]")
    def dpp(ctrl,bank=0xf): return f"{ctrl} row_mask:0xf bank_mask:{bank:#x}"
    def fstore(op,data,addr,soff,off=0):
        A(f"{op} {data}, {addr}, {sF}, {soff} offen offset:{off}{' sc1' if M[0] else ''}")
    rid=[0]
    def spin():
        rid[0]+=1
        if stamps:
            A(f"s_mov_b32 s3, {rid[0]}")
            if rid[0]<=10: A(f"s_add_u32 {sdbg}, {sdbg}, {1<<(3*(rid[0]-1))}")
        A(f"s_sub_u32 {sspin}, {sspin}, 1"); A("s_cbranch_scc1 L_giveup")
        hop(); padsite()
    pid=[0]
    def padsite():
        if not M[0]:
            pid[0]+=1
            for _ in range(o.get("_pads",{}).get(pid[0],0)): A("s_nop 0")
    def mark():
        if not M[0]: A(f"BR{pid[0]}:")
    hops=o.get("_hops"); hid=[0]
    def hop():
        if M[0]: return
        hid[0]+=1; k=hid[0]
        if "_hops" not in o: A(f"HC{k}:"); return
        if k in o.get("_page",()): A(f"s_branch H{k}"); A.raw(".p2align 12")
        for ch in hops or []:
            if k in ch:
                i=ch.index(k); A(f"H{k}:"); A(f"s_cbranch_execz {'H%d'%ch[i+1] if i+1<len(ch) else 'L_exit'}")
    def lab(l): A(f"{l}{M[0]}:")
    def retry(l): A(f"s_cbranch_vccnz {l}{M[0]}")
    def head(l):
        lab(l)
        if o["mask"]: A("s_mov_b64 vcc, -1"); lab(l+"_m")
    def mon():
        if o["mask"]: A("s_mov_b64 exec, vcc")
    def moff():
        if o["mask"]: A("s_mov_b64 exec, -1")
    def mretry(l): retry(l+"_m" if o["mask"] else l)
    def rs4(dst,t0,t1,Dr):
        A(f"v_add_f32_dpp v{t0}, v{Dr}, v{Dr} "+dpp("row_ror:8",0x3))
        A(f"v_add_f32_dpp v{t1}, v{Dr+1}, v{Dr+1} "+dpp("row_ror:8",0x3))
        A(f"v_add_f32_dpp v{t0}, v{Dr+2}, v{Dr+2} "+dpp("row_ror:8",0xc))
        A(f"v_add_f32_dpp v{t1}, v{Dr+3}, v{Dr+3} "+dpp("row_ror:8",0xc))
        A(f"v_add_f32_dpp v{dst}, v{t0}, v{t0} "+dpp("row_shl:4",0x5))
        A(f"v_add_f32_dpp v{dst}, v{t1}, v{t1} "+dpp("row_shr:4",0xa))
    R16=["quad_perm:[1,0,3,2]","quad_perm:[2,3,0,1]","row_ror:4","row_ror:8"]
    def ws_srd():
        A("s_add_u32 s36, s26, 0x1fffff"); A("s_addc_u32 s37, s27, 0"); A("s_and_b32 s36, s36, 0xffe00000")
    wid=[0]
    def lds_wait(word,n,mask=False):
        wid[0]+=1
        A(f"L_w{wid[0]}:")
        if word==0 and o.get("psleep"): A(f"s_sleep {o['psleep']}")
        A(f"ds_read_b32 v15, {vZ} offset:{L_SYNC+4*word}"); A("s_waitcnt lgkmcnt(0)")
        if mask: A("v_and_b32 v14, 0xffff, v15")
        A(f"v_cmp_gt_i32 vcc, {n}, v{14 if mask else 15}"); A(f"s_cbranch_vccnz L_w{wid[0]}")
    def fill(key,dflt):
        for ch in o.get("f_"+key,dflt) if o.get("fill",0) else "":
            A("v_mov_b32 v14, v14" if ch=="v" else f"s_nop {ch}")
    def lds_arrive(word):
        A("s_mov_b64 exec, 1"); A(f"ds_add_u32 {vZ}, {vONE} offset:{L_SYNC+4*word}"); A("s_mov_b64 exec, -1")
    def barrier(it,word):
        if it==0: lds_arrive(word); lds_wait(word,4)
        else: A("s_waitcnt lgkmcnt(0)"); A("s_barrier")
    def dump(slot):
        A("s_waitcnt vmcnt(0) lgkmcnt(0)")
        A(f"s_lshl_b32 s48, s2, 3"); A(f"s_add_u32 s48, s48, {slot}"); A("s_lshl_b32 s48, s48, 8"); A(f"s_add_u32 s48, s48, {WS_DBG:#x}")
        A("v_mov_b32 v14, s48")
        for k,r in enumerate([f"s{STAMP0+2*k}" for k in range(16)]+[sspin,"s44",sN,"s3",sdbg]):
            A(f"v_mov_b32 v15, {r}"); A(f"buffer_store_dword v15, v14, {sW}, 0 offen offset:{4*k}")
        if o.get("cal") and slot==sw:
            A("s_mov_b32 s12, 0")
            A("L_cal0:"); A("s_memrealtime s[4:5]"); A("s_waitcnt lgkmcnt(0)")
            A("L_cal1:"); A("s_memrealtime s[6:7]"); A("s_memtime s[8:9]"); A("s_waitcnt lgkmcnt(0)"); A("s_cmp_eq_u32 s6, s4"); A("s_cbranch_scc1 L_cal1")
            A("v_mov_b32 v16, s6"); A("v_mov_b32 v17, s8"); A(f"buffer_store_dwordx2 v[16:17], v14, {sW}, s12 offen offset:96")
            A("s_sleep 9"); A("s_add_u32 s12, s12, 8"); A("s_cmp_lt_u32 s12, 160"); A("s_cbranch_scc1 L_cal0")

    stamp("start")
    if o.get("pad"): A("s_memrealtime s[70:71]")
    A(f"v_readfirstlane_b32 {sw}, v0"); A(f"v_mov_b32 {vZ}, 0")
    A(f"s_cmp_eq_u32 {sw}, 320"); A("s_cbranch_scc1 L_init")
    A("L_args:")
    A("s_load_dwordx16 s[4:19], s[0:1], 0"); A("s_load_dwordx8 s[20:27], s[0:1], 64")
    A("s_cmp_ge_u32 s2, 256"); A("s_cbranch_scc1 L_exit")
    if stamps: A("s_mov_b32 s3, 0"); A(f"s_mov_b32 {sdbg}, 0")
    A(f"s_lshr_b32 {sw}, {sw}, 6"); A("v_and_b32 v0, 63, v0")
    A(f"s_and_b32 {sg}, s2, 7"); A(f"s_lshr_b32 {sc}, s2, 3")
    A(f"s_and_b32 {skq}, {sc}, 3"); A(f"s_lshr_b32 {snb}, {sc}, 2")
    A("s_mov_b32 s31, 0x20000"); A("s_mov_b32 s38, 0x500000"); A("s_mov_b32 s39, s31"); A("s_mov_b32 s35, s31")
    A(f"v_lshlrev_b32 {vL16}, 4, v0"); A("v_lshrrev_b32 v1, 4, v0")
    A(f"s_cmp_ge_u32 {sw}, 1"); A("s_cbranch_scc1 L_roles")
    A("v_lshlrev_b32 v8, 1, v1"); A("v_and_b32 v6, 7, v0"); A("v_xor_b32 v6, v6, v8"); A("v_lshlrev_b32 v6, 4, v6")
    A("v_lshrrev_b32 v7, 3, v0"); A("v_lshl_add_u32 v9, v7, 13, v6")
    A(f"v_mov_b32 v3, {5-(D+3)//4}")
    for u in range(1,4): A(f"v_add_u32 v{11+u}, {u*(65536-1024):#x}, v9")
    A("v_bfe_u32 v2, v0, 1, 1"); A("v_lshl_add_u32 v2, v1, 1, v2"); A("v_bfe_u32 v10, v0, 2, 2"); A("v_lshl_add_u32 v2, v2, 2, v10"); A("v_and_b32 v10, 1, v0"); A("v_lshl_add_u32 v2, v2, 1, v10"); A("v_lshlrev_b32 v2, 2, v2")
    A(f"s_lshl_b32 {sT1}, {skq}, 8"); A("s_movk_i32 s34, 1024"); A(f"s_mov_b32 m0, {L_XB:#x}")
    A(f"s_lshl_b32 {sB}, {skq}, 20"); A(f"s_lshl_b32 {sT0}, {sg}, 10"); A(f"s_add_u32 {sB}, {sB}, {sT0}"); A(f"s_lshl_b32 {sC}, {snb}, 7"); A(f"s_add_u32 {sB}, {sB}, {sC}"); A(f"s_xor_b32 {sB}, {sB}, 0x80")
    A("v_and_b32 v4, 15, v0"); A("v_xor_b32 v4, v4, v8"); A("v_lshlrev_b32 v4, 4, v4"); A("v_lshl_add_u32 v4, v1, 8, v4"); A("v_xor_b32 v11, 0x80, v4")
    A(f"s_lshl_b32 {sA}, {sg}, 24"); A(f"s_lshl_b32 {sT0}, {sc}, 15"); A(f"s_add_u32 {sA}, {sA}, {sT0}"); A(f"s_add_u32 {sA}, {sA}, {61440*256}")
    n=[0]
    DD=o.get("DD",[D]*6); cur=[D]
    def tile(ptr,size,base,lds,rs,groups,voffs,first=False):
        D=DD[n[0]]
        if (D+3)//4!=(cur[0]+3)//4: A(f"v_add_u32 v3, {(cur[0]+3)//4-(D+3)//4}, v3")
        cur[0]=D
        n[0]+=1; lbl=f"L_ld{n[0]}"
        if size is not None: A(f"s_mov_b32 s30, {size}")
        A(f"s_mov_b32 {sN}, {sc}"); A(f"s_add_u32 {sR}, {sc}, {groups}")
        A(f"s_mov_b64 s[28:29], {ptr}")
        A(f"{lbl}:")
        A(f"s_and_b32 s44, {sN}, {groups-1}"); A("s_lshl_b32 s45, s44, 12"); A(f"s_add_u32 m0, s45, {lds:#x}")
        if rs: A(f"s_mul_i32 s45, s44, {32*rs}")
        A(f"s_add_u32 s45, s45, {base}")
        for u in range(4):
            A(f"buffer_load_dwordx4 {voffs[u&1]}, {sL}, s45 offen offset:{1024*u} {nt} lds")
            if rs and u<3: A(f"s_add_u32 s45, s45, {8*rs-1024}")
        A("v_add_u32 v3, 1, v3"); A(f"s_add_u32 {sN}, {sN}, 1")
        if not first or D<20:
            A(f"s_waitcnt vmcnt({D-4})"); A(f"ds_write_b32 {vZ}, v3 offset:{L_SYNC}")
        A(f"s_cmp_lg_u32 {sN}, {sR}"); A(f"s_cbranch_scc1 {lbl}")
    assert D>=20
    n[0]=1
    A("s_mov_b32 s30, 0x400000")
    if not o.get("hfirst",0): A("s_barrier")
    hstamp(4); A("s_waitcnt lgkmcnt(0)")
    A(f"s_mov_b64 s[32:33], {pX}"); A(f"s_mov_b64 s[28:29], {pQ}")
    if o.get("hfirst",0): A("s_barrier")
    A(f"buffer_load_dword v2, {sP}, {sT1} offen lds")
    for gr in range(4):
        A(f"s_movk_i32 m0, {L_WQ+4096*gr:#x}")
        if gr: A(f"s_add_u32 {sB}, {sB}, 0x40000")
        for u in range(4): A(f"buffer_load_dwordx4 v{11+u if u else 9}, {sL}, {sB} offen offset:{1024*u} {nt} lds")
    hstamp(1)
    hstamp(6)
    tile(pK,0x8000000,sA,L_K,0,8,("v4","v11"))
    hstamp(7)
    A("s_branch L_loader2")
    A("L_init:")
    A("v_lshlrev_b32 v2, 2, v0"); A(f"ds_write_b32 v2, {vZ} offset:{L_SYNC-1280}"); A("s_waitcnt lgkmcnt(0)"); A("s_branch L_args")
    A("L_roles:")
    A(f"s_cmp_eq_u32 {sw}, 1"); A("s_cbranch_scc1 L_helper")
    A(f"s_cmp_ge_u32 {sw}, 6"); A("s_cbranch_scc1 L_probe")
    if o.get("exp_nocomp"): A("s_endpgm")
    A(f"s_sub_u32 {sw}, {sw}, 2")
    A(f"s_cmp_ge_u32 {sc}, 3"); A("s_cbranch_scc1 L_nopf")
    A("s_getpc_b64 s[32:33]"); A("s_and_b32 s32, s32, 0xfffffc00"); A(f"s_mov_b32 s34, L_hotend-{NAME}_kernel")
    A(f"s_lshl_b32 {sT0}, {sc}, 2"); A(f"s_add_u32 {sT0}, {sT0}, {sw}"); A(f"s_lshl_b32 {sT0}, {sT0}, 10")
    A(f"buffer_load_dwordx4 v[252:255], {vL16}, {sP}, {sT0} offen offset:1024")
    A("L_nopf:")
    A("s_barrier"); A("s_branch L_setup")
    A("L_probe:")
    if o.get("exp_noprobe"): A("s_endpgm")
    A(f"s_xor_b32 s51, {sw}, {sc}"); A("s_and_b32 s51, s51, 1"); A("s_lshl_b32 s49, s51, 13")
    A(f"s_lshl_b32 s48, {sg}, 14"); A("s_add_u32 s48, s48, s49"); A(f"s_lshl_b32 s49, {sc}, 8"); A("s_add_u32 s48, s48, s49"); A(f"s_add_u32 s48, s48, {WS_PR:#x}")
    A("s_barrier"); A("s_waitcnt lgkmcnt(0)")
    ws_srd()
    A("s_memtime s[44:45]"); A("s_load_dword s50, s[36:37], s48"); A("s_waitcnt lgkmcnt(0)"); A("s_memtime s[46:47]")
    A("s_branch L_probe2")
    A("L_exit:"); A("s_endpgm")
    A("L_helper:")
    if o.get("exp_nohelp")==2: A("s_endpgm")
    A("s_setprio 3")
    for k in range(8,12): A(f"v_mov_b32 v{k}, -1")
    A(f"v_and_b32 v2, {NREP-1}, v0"); A("v_lshlrev_b32 v2, 7, v2")
    A(f"s_lshl_b32 {sA}, {sg}, 11"); A(f"s_add_u32 {sA}, {sA}, {WS_PF:#x}")
    A(f"s_lshl_b32 {sT1}, {sg}, 17"); A(f"s_add_u32 {sT1}, {sT1}, {WS_F:#x}"); A(f"s_lshl_b32 {sC}, {sc}, 11"); A(f"s_add_u32 {sB}, {sT1}, {sC}")
    if o.get("trim",1): A(f"s_cmp_gt_u32 {sc}, 25"); A(f"s_cselect_b32 {sB}, {OOB-WS_SLOW:#x}, {sB}")
    A(f"s_andn2_b32 s44, 1, {snb}"); A("s_lshl_b32 s44, s44, 7"); A(f"s_lshl_b32 s45, {skq}, 2"); A("s_add_u32 s44, s44, s45"); A(f"s_lshr_b32 s45, {snb}, 1"); A("s_add_u32 s44, s44, s45"); A("s_lshl_b32 s44, s44, 4"); A(f"s_add_u32 s44, s44, {F_Q0:#x}")
    A(f"s_lshl_b32 s45, {skq}, 5"); A(f"s_add_u32 s45, s45, {F_ST0-256:#x}")
    A("v_and_b32 v3, 7, v0"); A("v_lshl_add_u32 v3, v3, 8, s44"); A("v_bfe_u32 v4, v0, 3, 1"); A("v_lshl_add_u32 v3, v4, 12, v3")
    A("v_cmp_gt_u32 vcc, 16, v0"); A(f"v_add_u32 v4, s45, {vL16}")
    A(f"s_cmp_eq_u32 {snb}, 0"); A("s_cselect_b32 s50, 18, 16"); A("s_bfm_b64 s[50:51], s50, 0"); A("v_cndmask_b32 v3, v4, v3, vcc")
    A("s_mov_b64 exec, s[50:51]")
    if not o.get("hfirst",0): A("s_barrier")
    hstamp(4)
    A("s_waitcnt lgkmcnt(0)")
    ws_srd()
    A(f"buffer_store_dwordx4 v[8:11], v3, {sW}, {sT1} offen")
    A("s_mov_b64 exec, -1")
    for k in range(2):
        if k==1 and o.get("hfirst",0)==2: A("s_barrier")
        A(f"buffer_store_dwordx4 v[8:11], {vL16}, {sW}, {sB} offen offset:{1024*k}")
    if o.get("hfirst",0)==1: A("s_barrier")
    A(f"s_add_u32 s40, s36, {WS_E:#x}"); A("s_addc_u32 s41, s37, 0"); A(f"s_load_dword {stag}, s[40:41], 0")
    A(f"buffer_load_dword v12, v2, {sW}, {sA} offen sc1 nt")
    hstamp(6)
    if o.get("exp_nohelp"): A("s_endpgm")
    A("s_branch L_helper2")
    A("L_probe2:")
    A("s_mov_b64 exec, 1"); A("s_waitcnt lgkmcnt(0)")
    A("s_sub_u32 s44, s46, s44"); A("s_min_u32 s44, s44, 0x3fff"); A("s_sub_u32 s45, 0x3fff, s44"); A("s_cmp_eq_u32 s51, 1"); A("s_cselect_b32 s44, s45, s44"); A("s_add_u32 s44, s44, 0x100000")
    A("v_mov_b32 v14, s44"); A(f"ds_add_u32 {vZ}, v14 offset:{L_SYNC+20}"); A("s_waitcnt lgkmcnt(0)")
    if hops:
        A("s_mov_b64 exec, 0"); A(f"s_cmp_eq_u32 {sw}, 6"); A(f"s_cbranch_scc1 H{hops[0][0]}"); A(f"s_branch H{hops[1][0]}")
    else: A("s_endpgm")
    A("L_loader2:")
    tile(pV,None,sA,L_V,0,8,("v4","v11"))
    hstamp(8)
    A("v_lshl_add_u32 v9, v7, 10, v6"); A("v_mul_u32_u24 v10, 3584, v7"); A("v_add_u32 v10, v10, v6")
    A(f"s_lshl_b32 {sT0}, {sg}, 2"); A(f"s_add_u32 {sT0}, {sT0}, {skq}"); A(f"s_lshl_b32 {sB}, {sT0}, 17"); A(f"s_add_u32 {sB}, {sB}, {sC}")
    tile(pO,0x400000,sB,L_WO,1024,4,("v9","v9"))
    A(f"s_bitcmp1_b32 {snb}, 0"); A(f"s_cselect_b64 {p1}, {p3}, {p1}")
    if o.get("bal",1):
        A(f"s_lshr_b32 s46, {sg}, 2"); A("s_lshl_b32 s46, s46, 1"); A(f"s_sub_u32 {sT0}, {sT0}, s46")
        A(f"s_lshr_b32 s47, {snb}, 1"); A(f"s_sub_u32 {sT1}, {sT0}, {skq}"); A(f"s_add_u32 {sT1}, {sT1}, s47"); A(f"s_lshl_b32 {sT1}, {sT1}, 7")
        A(f"s_mul_i32 {sB}, {skq}, {128*3584}"); A(f"s_add_u32 {sB}, {sB}, {sT1}")
        A(f"s_and_b32 s46, {sg}, 3"); A("s_lshl_b32 s46, s46, 2")
        A("s_add_u32 s47, s47, s46"); A("s_cmp_ge_u32 s47, 14"); A(f"s_cselect_b32 s30, 0, {512*3584:#x}")
        tile(p1,None,sB,L_WU,3584,4,("v10","v10"))
        A(f"s_add_u32 s47, {skq}, s46"); A("s_cmp_ge_u32 s47, 14"); A(f"s_cselect_b32 s30, 0, {512*3584:#x}")
    else:
        A(f"s_mul_i32 {sB}, {skq}, {128*3584}"); A(f"s_lshl_b32 {sT1}, {sg}, 9"); A(f"s_add_u32 {sB}, {sB}, {sT1}"); A(f"s_lshr_b32 {sT1}, {snb}, 1"); A(f"s_lshl_b32 {sT1}, {sT1}, 7"); A(f"s_add_u32 {sB}, {sB}, {sT1}")
        A(f"s_cmp_eq_u32 {sg}, 7"); A(f"s_cselect_b32 s30, 0, {512*3584:#x}")
        tile(p1,None,sB,L_WU,3584,4,("v10","v10"))
    A(f"s_lshl_b32 {sB}, {sT0}, 16"); A(f"s_add_u32 {sB}, {sB}, {sC}")
    tile(p2,None,sB,L_W2,1024,2,("v9","v9"))
    hstamp(2)
    A("s_mov_b64 exec, 1")
    for k in range((cur[0]+3)//4-2,-1,-1):
        A("v_add_u32 v3, 1, v3"); A(f"s_waitcnt vmcnt({4*k})"); A(f"ds_write_b32 {vZ}, v3 offset:{L_SYNC}")
    A("s_mov_b64 exec, -1")
    hstamp(3)
    A("s_waitcnt lgkmcnt(0)")
    A("s_branch L_ldump" if stamps and not o.get("cyc") and not o.get("nohd") else "s_endpgm")
    A("L_helper2:")
    A(f"s_getreg_b32 {sD}, hwreg(HW_REG_XCC_ID)"); A(f"s_and_b32 {sD}, {sD}, 7")
    if o.get("force_slow"): A(f"s_and_b32 {sD}, {sc}, 1")
    A(f"s_add_u32 s40, s36, {sA}"); A("s_addc_u32 s41, s37, 0")
    A(f"s_lshl_b32 {sC}, {sc}, 2"); A(f"s_add_u32 {sC}, {sC}, {sA}")
    A(f"s_lshl_b32 {sN}, {sg}, 12"); A(f"s_add_u32 {sN}, {sN}, {WS_FL:#x}"); A(f"s_lshl_b32 {sR}, {sc}, 7"); A(f"s_add_u32 {sR}, {sR}, {sN}")
    A(f"s_mov_b32 {sspin}, {SPIN}"); A(f"v_mov_b32 {vONE}, 1")
    A("s_waitcnt vmcnt(1)")
    A(f"ds_write_b32 {vZ}, {vONE} offset:{L_SYNC+24}")
    A("s_mov_b32 s48, 0x200000")
    lds_wait(5,"s48")
    A("v_readfirstlane_b32 s48, v15"); A(f"s_cmp_gt_u32 s48, {0x200000+0x3fff-80:#x}"); A("s_cselect_b32 s49, 8, 0"); A(f"s_cmp_gt_u32 s48, {0x200000+0x3fff+80:#x}"); A("s_cselect_b32 s49, 16, s49")
    if stamps: A(f"s_sub_u32 {sdbg}, s48, {0x200000+0x3fff-10000:#x}")
    A(f"s_add_u32 {stag}, {stag}, {TAGK:#x}"); A(f"s_and_b32 {stag}, {stag}, 0xffffffe0")
    A(f"s_or_b32 s42, {stag}, {sD}"); A("s_mov_b32 s43, s42"); A("s_or_b32 s49, s49, s42"); A("v_mov_b32 v13, s49")
    A(f"s_mov_b64 exec, {(1<<NREP)-1:#x}")
    hstamp(1)
    A(f"buffer_store_dword v13, v2, {sW}, {sC} offen")
    A("s_mov_b64 exec, -1")
    if not o.get("exp_notouch"):
        for k in range(2): A(f"buffer_load_dwordx4 v[{20+4*k}:{23+4*k}], {vL16}, {sW}, {sB} offen offset:{1024*k} sc1 {o['ptnt']}")
    A("s_mov_b32 s48, 0"); A(f"s_mov_b32 {sC}, {NREP}")
    A("s_waitcnt vmcnt(0)" if o.get("exp_notouch") else "s_waitcnt vmcnt(2)")
    A("L_hpoll:")
    lds_wait(0,"s48")
    A("v_readfirstlane_b32 s48, v15")
    A("s_load_dwordx16 s[4:19], s[40:41], 0"); A("s_load_dwordx16 s[20:35], s[40:41], 64")
    A("s_waitcnt lgkmcnt(0)")
    A("s_xor_b64 s[44:45], s[4:5], s[42:43]")
    for k in range(1,16): A(f"s_xor_b64 s[46:47], s[{4+2*k}:{5+2*k}], s[42:43]"); A("s_or_b64 s[44:45], s[44:45], s[46:47]")
    A("s_or_b32 s44, s44, s45"); A("s_andn2_b32 s44, s44, 24")
    A("s_cbranch_scc0 L_hfast")
    if stamps: A(f"s_sub_u32 {sspin}, {sspin}, 1")
    A("s_add_u32 s40, s40, 128"); A("s_addc_u32 s41, s41, 0")
    A("s_add_u32 s48, s48, 1"); A("s_min_u32 s48, s48, 30")
    A(f"s_sub_u32 {sC}, {sC}, 1"); A(f"s_cmp_lg_u32 {sC}, 0"); A("s_cbranch_scc1 L_hpoll")
    A("s_branch L_hvec")
    A("L_hfast:")
    A("s_mov_b64 exec, 1"); A("v_mov_b32 v13, 0x10001"); A(f"ds_add_u32 {vZ}, v13 offset:{L_SYNC+4}")
    hstamp(2)
    for k in range(5,36): A(f"s_add_u32 s4, s4, s{k}")
    A("s_lshl_b32 s5, s42, 5"); A("s_sub_u32 s4, s4, s5"); A("s_cmp_gt_u32 s4, 256"); A("s_cselect_b32 s49, 16, 0")
    A("L_hok:")
    A("s_and_b32 s49, s49, 16"); A("s_lshl_b32 s49, s49, 9"); A("v_mov_b32 v13, s49"); A(f"ds_write_b32 {vZ}, v13 offset:{L_SYNC+16}")
    A("s_mov_b64 exec, -1")
    A(f"s_lshl_b32 s4, {sg}, 14"); A(f"s_lshl_b32 s5, {skq}, 11"); A("s_add_u32 s4, s4, s5"); A(f"s_lshl_b32 s5, {snb}, 8"); A("s_add_u32 s4, s4, s5"); A("s_add_u32 s5, s4, 0x2000")
    A("v_and_b32 v3, 15, v0"); A("v_lshlrev_b32 v3, 4, v3"); A("v_lshl_add_u32 v3, v1, 17, v3")
    A(f"s_lshr_b32 s6, {snb}, 1"); A("s_lshl_b32 s6, s6, 14"); A(f"s_and_b32 s7, {snb}, 1"); A("s_lshl_b32 s7, s7, 12"); A("s_add_u32 s6, s6, s7")
    A(f"s_lshl_b32 s7, {sg}, 2"); A(f"s_add_u32 s7, s7, {skq}"); A("s_lshl_b32 s7, s7, 6"); A("s_add_u32 s6, s6, s7"); A(f"s_add_u32 s6, s6, {WS_S1:#x}")
    A("s_add_u32 s7, s6, 0x40000"); A("s_add_u32 s8, s6, 0x80000")
    A("v_and_b32 v4, 3, v0"); A("v_lshlrev_b32 v4, 4, v4"); A("v_bfe_u32 v7, v0, 2, 1"); A("v_lshl_add_u32 v4, v7, 11, v4"); A("v_bfe_u32 v7, v0, 3, 1"); A("v_lshl_add_u32 v4, v7, 13, v4"); A("v_lshl_add_u32 v4, v1, 16, v4")
    lds_wait(0,o.get("clrat",23))
    if o.get("prealloc",1):
        A(f"buffer_store_dwordx4 v[8:11], v3, {sW}, s4 offen sc1"); A(f"buffer_store_dwordx4 v[8:11], v3, {sW}, s5 offen sc1")
    A(f"buffer_store_dwordx4 v[8:11], v4, {sW}, s6 offen sc1")
    if not o.get("lateclr",1):
        A(f"buffer_store_dwordx4 v[8:11], v4, {sW}, s7 offen sc1")
        A("s_mov_b64 exec, 0xffff")
        A(f"buffer_store_dwordx4 v[8:11], v4, {sW}, s8 offen sc1")
    A("L_hdone:")
    A("s_waitcnt vmcnt(0) lgkmcnt(0)")
    hstamp(3)
    A("s_branch L_hdump" if stamps and not o.get("cyc") and not o.get("nohd") and not o.get("nohd2") else "s_endpgm")

    A("L_setup:")
    A("v_and_b32 v2, 3, v0"); A("v_bfe_u32 v3, v0, 2, 2")
    A("v_and_b32 v10, 1, v1"); A("v_lshl_add_u32 v10, v2, 1, v10"); A("v_lshl_add_u32 v10, v10, 2, v3"); A("v_bfe_u32 v9, v0, 3, 2")
    A(f"s_lshl_b32 {sT0}, {skq}, 2"); A(f"s_add_u32 {sD}, {sT0}, {sw}")
    A(f"s_lshl_b32 {sT0}, {sD}, 6"); A(f"v_lshl_add_u32 {vOUT}, v10, 1, {sT0}")
    A("s_mov_b32 s30, 1024")
    A("s_waitcnt lgkmcnt(0)")
    stamp("k.arg")
    ws_srd()
    A(f"s_add_u32 s40, s36, {WS_E:#x}"); A("s_addc_u32 s41, s37, 0")
    A(f"s_mov_b64 s[28:29], {pOUT}")
    A("s_mov_b32 s68, 0"); A("s_mov_b32 s69, -1"); A(f"s_mov_b32 {sspin}, {SPIN}")
    A(f"v_mov_b32 {vONE}, 1"); A(f"v_mov_b32 {vNAN}, -1")
    A("v_and_b32 v12, 15, v0"); A(f"v_mov_b32 v13, {OOB:#x}")
    A("v_cmp_gt_u32 s[62:63], 32, v0")
    A("v_and_b32 v14, 1, v0"); A("v_lshlrev_b32 v14, 4, v14"); A("v_mov_b32 v15, 0xffff"); A("v_lshlrev_b32 v14, v14, v15")
    A("v_lshrrev_b32 v15, 1, v12")
    for k in range(8): A(f"v_cmp_eq_u32 s[{4+2*k}:{5+2*k}], {k}, v15")
    for k in range(8): A(f"v_cndmask_b32 v{MASK+k}, 0, v14, s[{4+2*k}:{5+2*k}]")
    A("v_lshrrev_b32 v15, 3, v12"); A("v_sub_u32 v15, v1, v15")
    for u in range(2): A(f"v_cmp_eq_u32 s[{4+2*u}:{5+2*u}], {2*u}, v15")
    for k in range(4):
        A(f"v_mov_b32 v{ONES+k}, 0x3f803f80"); A(f"v_or_b32 v{SEL+k}, v{MASK+k}, v{MASK+4+k}"); A(f"v_and_b32 v{SEL+k}, v{ONES+k}, v{SEL+k}")
    for u in range(2):
        for k in range(4): A(f"v_cndmask_b32 v{SELU+4*u+k}, 0, v{SEL+k}, s[{4+2*u}:{5+2*u}]")
    A("v_and_b32 v14, 1, v0"); A("v_bfe_u32 v15, v0, 2, 1"); A("v_lshl_add_u32 v15, v15, 1, v14"); A("v_mov_b32 v14, 1.0")
    for k in range(4): A(f"v_cmp_eq_u32 s[{4+2*k}:{5+2*k}], {k}, v15")
    for k in range(4): A(f"v_cndmask_b32 v{SELT+k}, 0, v14, s[{4+2*k}:{5+2*k}]")
    A("v_lshrrev_b32 v14, 5, v0"); A("v_lshlrev_b32 v14, 14, v14"); A("v_lshl_add_u32 v14, v9, 11, v14"); A("v_and_b32 v15, 7, v0"); A("v_lshl_add_u32 v14, v15, 4, v14")
    A(f"s_lshl_b32 s48, {sD}, 7"); A(f"s_and_b32 s49, {sg}, 3"); A("s_lshl_b32 s49, s49, 17"); A("s_add_u32 s48, s48, s49"); A(f"v_add_u32 {vSG0}, s48, v14")
    A(f"s_lshl_b32 s48, {sg}, 14"); A(f"s_lshl_b32 s49, {skq}, 11"); A("s_add_u32 s48, s48, s49")
    A(f"s_lshl_b32 s49, {snb}, 8"); A("s_add_u32 s48, s48, s49"); A(f"s_lshl_b32 s49, {sw}, 6"); A("s_add_u32 s48, s48, s49")
    A(f"v_lshl_add_u32 v14, v12, 2, s48"); A(f"v_lshl_add_u32 {vSP0}, v1, 17, v14")
    A("v_bfe_u32 v14, v0, 2, 1"); A("v_lshlrev_b32 v14, 3, v14"); A("v_lshl_add_u32 v14, v2, 4, v14"); A("v_lshl_add_u32 v14, v9, 1, v14"); A(f"v_add_u32 {vXS}, s49, v14")
    A(f"s_and_b32 s48, {sg}, 3"); A("s_lshl_b32 s48, s48, 2"); A(f"s_add_u32 s48, s48, {skq}"); A("s_lshl_b32 s48, s48, 3"); A(f"s_add_u32 s48, s48, {sw}"); A("s_lshl_b32 s48, s48, 11"); A(f"v_add_u32 {vSG}, s48, {vL16}")
    A(f"s_lshr_b32 s48, {snb}, 1"); A("s_lshl_b32 s48, s48, 14"); A(f"s_and_b32 s49, {snb}, 1"); A("s_lshl_b32 s49, s49, 12"); A("s_add_u32 s48, s48, s49")
    A(f"s_lshr_b32 s49, {sw}, 1"); A("s_lshl_b32 s49, s49, 11"); A("s_add_u32 s48, s48, s49"); A(f"s_and_b32 s49, {sw}, 1"); A("s_lshl_b32 s49, s49, 5"); A("s_add_u32 s48, s48, s49")
    A(f"s_lshl_b32 s49, {sg}, 2"); A(f"s_add_u32 s49, s49, {skq}"); A("s_lshl_b32 s49, s49, 6"); A("s_add_u32 s48, s48, s49")
    A("v_lshl_add_u32 v14, v12, 1, s48"); A(f"v_lshl_add_u32 {vSP}, v1, 16, v14")
    A(f"s_lshl_b32 s48, {sw}, 10"); A(f"v_add_u32 {vQG}, s48, {vL16}")
    A(f"s_load_dword {stag}, s[40:41], 0")
    A(f"s_and_b32 s50, {snb}, 1"); A("s_xor_b32 s48, s50, 1"); A("s_lshl_b32 s48, s48, 2"); A(f"s_add_u32 s48, s48, {sw}"); A("s_lshl_b32 s48, s48, 9")
    A(f"s_lshl_b32 s49, {skq}, 2"); A(f"s_lshr_b32 s51, {snb}, 1"); A("s_add_u32 s49, s49, s51"); A("s_lshl_b32 s49, s49, 4"); A("s_add_u32 s48, s48, s49"); A(f"s_add_u32 s48, s48, {F_Q0:#x}")
    A("v_lshrrev_b32 v14, 3, v12"); A("v_lshlrev_b32 v14, 8, v14"); A("v_and_b32 v15, 7, v0"); A("v_lshl_add_u32 v14, v15, 1, v14"); A("v_lshl_add_u32 v14, v1, 12, v14"); A("v_add_u32 v14, s48, v14")
    A(f"v_cndmask_b32 {vQP}, v13, v14, s[62:63]")
    A("s_lshl_b32 s48, s51, 10"); A(f"s_lshl_b32 s49, {sw}, 8"); A("s_add_u32 s48, s48, s49"); A("s_lshl_b32 s49, s50, 3"); A("s_add_u32 s48, s48, s49"); A(f"s_lshl_b32 s49, {skq}, 1"); A("s_add_u32 s48, s48, s49"); A(f"s_add_u32 s48, s48, {F_U:#x}")
    A("v_lshl_add_u32 v14, v12, 4, s48"); A("v_lshl_add_u32 v14, v1, 12, v14"); A(f"v_cndmask_b32 {vUP}, v13, v14, s[62:63]")
    A(f"s_lshl_b32 s48, {skq}, 10"); A(f"s_add_u32 s48, s48, {F_U:#x}"); A(f"v_add_u32 {vUG}, s48, {vL16}")
    A("v_lshlrev_b32 v14, 3, v12"); A(f"v_add_u32 {vST}, {F_ST:#x}, v14")
    A(f"s_lshl_b32 s49, {skq}, 8"); A(f"s_add_u32 s49, s49, {F_LAM:#x}"); A("v_lshrrev_b32 v15, 5, v0"); A("v_lshl_add_u32 v14, v15, 7, v14"); A(f"v_add_u32 {vLG}, s49, v14")
    A(f"s_lshl_b32 s48, {sD}, 3"); A(f"s_add_u32 s48, s48, {F_ST:#x}"); pass
    A("v_and_b32 v15, 0x2f, v0"); A("v_cmp_eq_u32 vcc, 0, v15"); A("v_lshl_add_u32 v14, v1, 2, s48"); A(f"v_cndmask_b32 {vSTP}, v13, v14, vcc")
    A(f"v_cmp_eq_u32 vcc, {sw}, v0")
    A(f"s_lshl_b32 s48, {sw}, 11"); A(f"s_lshl_b32 s49, {sc}, 6"); A("s_add_u32 s48, s48, s49"); A("v_and_b32 v14, 60, v0"); A("v_add_u32 v14, s48, v14"); A(f"v_lshl_add_u32 {vAP}, v2, 13, v14")
    A(f"s_lshl_b32 s48, {sw}, 1"); A("s_add_u32 s48, s48, s50"); A("s_lshl_b32 s48, s48, 2"); A(f"s_add_u32 s48, s48, {skq}"); A("s_lshl_b32 s48, s48, 2"); A("s_add_u32 s48, s48, s51"); A("s_lshl_b32 s48, s48, 3"); A(f"s_add_u32 s48, s48, {F_LAM:#x}")
    A("v_mov_b32 v14, s48"); A(f"v_cndmask_b32 {vLP}, v13, v14, vcc")
    A(f"s_lshl_b32 s48, {sD}, 11"); A(f"v_add_u32 {vAG}, s48, {vL16}")
    A(f"s_lshl_b32 s49, {sw}, 6"); A("v_lshrrev_b32 v9, 2, v0")
    A("v_and_b32 v14, 1, v2"); A("v_and_b32 v15, 1, v1"); A("v_lshl_add_u32 v14, v14, 1, v15"); A("v_lshlrev_b32 v14, 4, v14"); A("v_lshrrev_b32 v15, 1, v2"); A("v_lshl_add_u32 v14, v15, 3, v14"); A("v_lshl_add_u32 v14, v3, 1, v14")
    A(f"v_add_u32 {vXW}, s49, v14")
    A("v_cmp_eq_u32 vcc, 1, v3")
    A(f"v_xor_b32 v14, {sw}, v2"); A("v_lshlrev_b32 v14, 6, v14"); A(f"v_lshl_add_u32 {vOR}, v1, 4, v14")
    A("v_xor_b32 v14, 18, v1"); A("v_lshlrev_b32 v14, 4, v14"); A(f"v_cndmask_b32 {vXR}, {vOR}, v14, vcc")
    A("v_lshlrev_b32 v14, 6, v1"); A("v_lshl_add_u32 v14, v2, 4, v14"); A(f"v_add_u32 v14, {L_PB}, v14")
    A(f"v_mov_b32 {vPF0}, v14"); A(f"v_xor_b32 {vPF1}, 0x80, v14")
    A(f"s_lshl_b32 s48, {sw}, 8"); A("v_lshl_add_u32 v15, v3, 2, v14"); A("v_add_u32 v15, s48, v15"); A("s_and_b32 s48, s49, 0x80"); A(f"v_xor_b32 {vPW}, s48, v15")
    A("v_lshl_add_u32 v14, v3, 8, v14"); A("v_and_b32 v15, 8, v0"); A("v_lshlrev_b32 v15, 4, v15"); A(f"v_xor_b32 {vPR}, v14, v15")
    for k in range(4): A(f"v_cmp_eq_u32 s[{4+2*k}:{5+2*k}], {k}, v3")
    A(f"v_cndmask_b32 {vAP4}, v13, {vAP}, s[4:5]")
    A(f"v_mov_b32 v15, {L_ZERO}")
    for k in range(4): A(f"v_cndmask_b32 {vPB[k]}, v15, {vPR}, s[{4+2*k}:{5+2*k}]")
    A(f"ds_write_b32 v15, {vZ}"); A(f"ds_write_b32 v15, {vZ} offset:4"); A(f"ds_write_b32 v15, {vZ} offset:8"); A(f"ds_write_b32 v15, {vZ} offset:12")
    A("v_lshrrev_b32 v14, 5, v0"); A("v_lshlrev_b32 v14, 6, v14"); A("v_lshl_add_u32 v14, v3, 4, v14"); A("v_and_b32 v15, 1, v1"); A("v_lshl_add_u32 v14, v15, 3, v14"); A("v_lshl_add_u32 v14, v2, 1, v14")
    A("s_mov_b32 s48, 0"); A(f"v_add_u32 {vHW}, s48, v14")
    A("v_and_b32 v14, 1, v0"); A("v_lshlrev_b32 v14, 6, v14"); A("v_lshl_add_u32 v14, v1, 4, v14"); A(f"v_add_u32 {vHR}, s48, v14")
    A("v_bfe_u32 v15, v0, 3, 2"); A(f"v_xor_b32 v15, {sw}, v15"); A("v_lshlrev_b32 v15, 5, v15"); A("v_lshl_add_u32 v14, v9, 7, v15"); A("v_lshl_add_u32 v14, v2, 3, v14")
    A(f"s_lshl_b32 s48, {sw}, 12"); A(f"v_add_u32 {vWR}, s48, v14")
    A("v_lshlrev_b32 v14, 2, v0"); A(f"ds_write_b32 v14, v{ONES} offset:{L_ONES}"); A(f"ds_write_b32 v14, v{ONES} offset:{L_XU+256}")
    A("v_and_b32 v14, 7, v0")
    A("v_lshlrev_b32 v14, 1, v14"); A("v_xor_b32 v14, v14, v1"); A("v_lshlrev_b32 v14, 4, v14"); A("v_lshl_add_u32 v14, v12, 8, v14")
    A(f"s_lshl_b32 s48, {sw}, 13"); A(f"s_add_u32 s48, s48, {L_K:#x}"); A("v_add_u32 v7, s48, v14"); A("v_xor_b32 v7, s49, v7")
    A(f"s_lshl_b32 s48, {sw}, 1"); A("v_lshrrev_b32 v14, 1, v2"); A("v_add_u32 v14, s48, v14"); A("v_and_b32 v15, 7, v9"); A("v_xor_b32 v14, v14, v15"); A("v_lshlrev_b32 v14, 5, v14")
    A("v_lshl_add_u32 v14, v9, 8, v14"); A("v_and_b32 v15, 1, v0"); A("v_lshl_add_u32 v14, v15, 4, v14"); A(f"v_add_u32 v8, {L_V:#x}, v14")
    A("s_waitcnt vmcnt(0) lgkmcnt(0)")
    A(f"v_cndmask_b32 {vOUT}, v13, {vOUT}, s[62:63]")
    A(f"s_add_u32 {stag}, {stag}, {TAGK:#x}"); A(f"s_and_b32 {sTG}, {stag}, 0x1fff"); A(f"s_or_b32 {sTG}, {sTG}, 0x2000"); A(f"s_lshl_b32 {sTF}, {sTG}, 16")
    A(f"s_lshl_b32 s48, {sg}, 17"); A(f"s_add_u32 s48, s48, {WS_F:#x}"); A("s_add_u32 s40, s36, s48"); A("s_addc_u32 s41, s37, 0"); A(f"s_mov_b32 s42, {FSZ:#x}"); A("s_mov_b32 s43, 0x20000")
    A(f"s_mov_b32 {sA}, 0x2000"); A(f"s_mov_b32 {sB}, {F_Q0:#x}"); A(f"s_mov_b32 {sC}, {F_Q0+0x1000:#x}"); A(f"s_mov_b32 {sT0}, {F_ST0-F_ST:#x}")
    A(f"v_add_u32 {vQR[0]}, {L_QB:#x}, {vQG}")
    for k in range(1,4): A(f"v_xor_b32 {vQR[k]}, {1024*k}, {vQR[0]}")
    A("s_mov_b32 s46, 0x3b000000"); A("s_mov_b32 s47, s46")
    A(f"s_mov_b32 s10, {o.get('smB',0x42000000):#x}")
    def wfrags(dst,lds):
        for s in range(4):
            if s: A(f"v_xor_b32 v15, {4096*s}, {vWR}")
            for hh in range(2): A(f"ds_read_b64_tr_b16 {d(dst+4*s+2*hh)}, {'v15' if s else vWR} offset:{lds+2048*hh}")
    stamp("setup")
    if o.get("exp_ldone"): lds_wait(0,o["exp_ldone"]); stamp("ldone")
    lds_wait(0,4)
    stamp("wq")
    A(f"ds_read_u16_d16_hi {vCAR}, {vXS} offset:{L_XB}")
    wfrags(WQ,L_WQ)
    hop()
    lds_wait(6,1)
    A(f"v_and_b32 {vCAR}, 0xffff0000, {vCAR}")

    WARM=[]; COLD=[]
    def emit(blocks):
        for m_,f in blocks: M[0]=m_; f()
        M[0]=""
    def gemv(W,kind,it,scale=None):
        X=T; Dr=T+4; G=T+20
        A(f"ds_read_b128 {q(X)}, {vOR if kind=='O' else vXR} offset:{dict(O=L_OB,Q=L_XB,U=L_XU)[kind]}")
        sb=o.get("stbr",1)
        if kind!="O":
            A(f"s_cmp_eq_u32 {snb}, {0 if (kind,it)==('Q',0) else sw}")
            if sb==0: A(f"s_cselect_b32 s48, {sT0 if (kind,it)==('Q',0) else 0}, {OOB:#x}")
            if sb==2: padsite()
        fill("g"+kind.replace("U","Q"),"vvv" if kind!="O" else "")
        yield
        A("s_waitcnt lgkmcnt(0)")
        for s in range(4): A(f"{MF} {q(Dr+4*s)}, {q(X)}, {q(W+4*s)}, 0")
        if kind!="O": A(f"{MF} {q(G)}, {q(X)}, {q(X)}, 0")
        yield
        A(f"v_add_f32 v{Dr}, v{Dr}, v{Dr+5}"); A(f"v_add_f32 v{Dr}, v{Dr}, v{Dr+10}")
        if scale: A(f"v_mul_f32 v{Dr}, v{Dr}, {scale}"); A(f"v_fmac_f32 v{Dr}, v{Dr+15}, {scale}")
        else: A(f"v_add_f32 v{Dr}, v{Dr}, v{Dr+15}")
        if kind!="O":
            A(f"v_cvt_pk_bf16_f32 v{Dr}, v{Dr}, v{Dr}")
            fstore("buffer_store_short",f"v{Dr}",vQP if kind=="Q" else vUP,0)
            if sb==2: mark()
            if sb: A(f"s_cbranch_scc0 L_ns{kind}{it}{M[0]}")
            fstore("buffer_store_dword",f"v{G}",vSTP,"s48" if sb==0 else (sT0 if (kind,it)==("Q",0) else 0),0x80*(2*it+(kind=='U')))
            lab(f"L_ns{kind}{it}")
        yield
    def run(g):
        for _ in g: pass
    def wait(f):
        if int(f): A(f"s_sleep {int(f)}")
        if f!=int(f): A(f"s_nop {int((f-int(f))*16)-1}")
    def fwait(k):
        f=o.get("fwait"+k,o["fwait"])
        if f=="ack": A("s_waitcnt vmcnt(0)")
        else: wait(f)
    def spublish(reg,hop_):
        if hop_==0:
            A(f"v_cvt_pk_bf16_f32 v{reg}, {sTF}, v{reg}")
            for so in (sR,sN): A(f"buffer_store_dword v{reg}, {vSP0}, {sW}, {so} offen sc1")
        else:
            A(f"v_cvt_pk_bf16_f32 v{reg}, v{reg}, v{reg}")
            for so in (sR,sN): A(f"buffer_store_short v{reg}, {vSP}, {sW}, {so} offen sc1")
    X0=T+28
    def s0load(t): A(f"buffer_load_dwordx4 {q(X0+4*t)}, {vSG0}, {sW}, {(sG1,sG2,sG3,sG0)[t]} offen sc1")
    def sack(hop_,extra=0):
        sw_=o.get(f"swait{hop_}",o["swait"])
        if sw_=="far": A(f"s_waitcnt vmcnt({extra})")
        else: wait(sw_)
    def sg_head(lbl,hop_):
        X=T; Dr=T+16; U=T+20; C=T+21
        stamp(lbl+".ack")
        if hop_==0:
            X=X0; m0_=o.get("mask0",0)
            if o.get("split0",0):
                s0load(3); A(f"s_branch {lbl}_in{M[0]}")
            elif m0_: A("s_mov_b64 vcc, -1")
            if o.get("back0"): A(f"s_branch {lbl}_f{M[0]}")
            lab(lbl); stamp(lbl+".try")
            if o.get("back0"): wait(o["back0"]); lab(lbl+"_f")
            if m0_: A("s_mov_b64 exec, vcc")
            for t in range(4): s0load(t)
            if m0_: A("s_mov_b64 exec, -1")
            spin()
            lab(lbl+"_in")
            for t in range(4):
                A(f"s_waitcnt vmcnt({3-t})")
                if t==3: stamp(lbl+".got")
                A(f"{MF} {q(Dr)}, {q(SELT)}, {q(X+4*t)}, {q(Dr) if t else 0}")
                A(f"v_bitop3_b32 v{C+1}, v{X+4*t}, v{X+4*t+1}, {sTG} bitop3:0x7e")
                A(f"v_bitop3_b32 v{C+2}, v{X+4*t+2}, v{X+4*t+3}, {sTG} bitop3:0x7e")
                A(f"v_or3_b32 v{C}, v{C+1}, v{C+2}, {'v%d'%C if t else 0}")
            A(f"v_cmp_ne_u16 vcc, 0, v{C}")
            mark(); retry(lbl)
            A(f"v_add_f32_dpp v{U}, v{Dr}, v{Dr} "+dpp("row_ror:8",0x3))
            A(f"v_add_f32_dpp v{U}, v{Dr+1}, v{Dr+1} "+dpp("row_ror:8",0xc))
        else:
            X=T+28
            def loads():
                A(f"buffer_load_dwordx4 {q(X)}, {vSG}, {sW}, {sN} offen sc1")
                A(f"buffer_load_dwordx4 {q(X+4)}, {vSG}, {sW}, {sN} offen offset:1024 sc1")
            pre=o.get(f"spipe{hop_}",o.get("spipe",()))
            for g_ in pre: loads(); A(f"s_sleep {g_}")
            bk=o.get(f"back{hop_}")
            if bk: A(f"s_branch {lbl}_f{M[0]}")
            lab(lbl); stamp(lbl+".try")
            if bk: wait(bk); lab(lbl+"_f")
            loads()
            spin()
            A(f"s_waitcnt vmcnt({1+2*len(pre)})")
            A(f"{MF} {q(Dr)}, {q(SEL)}, {q(X)}, 0")
            A(f"s_waitcnt vmcnt({2*len(pre)})")
            stamp(lbl+".got")
            A(f"{MF} {q(Dr)}, {q(SEL)}, {q(X+4)}, {q(Dr)}")
            A(f"v_max_u32 v{C}, v{X}, v{X+4}"); A(f"v_cmp_eq_u32 vcc, -1, v{C}"); mark(); retry(lbl)
            rs4(U,C,C+1,Dr)
        A(f"v_cvt_pk_bf16_f32 v{U}, 0, v{U}")
        A(f"v_add_f32 v{U}, v{U}, {vCAR}")
        A(f"v_cvt_pk_bf16_f32 v{U}, 0, v{U}")
        if hop_<3: A(f"ds_write_b16_d16_hi {vXW if hop_ else vXS}, v{U} offset:{L_XB if hop_==1 else L_XU}")
        if hop_==3: A(f"buffer_store_short_d16_hi v{U}, {vOUT}, {sL}, 0 offen")
        if hop_: A(f"v_cmp_u_f32 vcc, v{U}, v{U}"); retry(lbl)
        stamp(lbl+".ok")
        if hop_==3: return
        A(f"v_mov_b32 {vCAR}, v{U}")
        A(f"s_add_u32 {sN}, {sN}, {0x40000 if hop_ else WS_S1:#x}"); A(f"s_xor_b32 {sR}, {sN}, 0x2000")
        A("s_waitcnt lgkmcnt(0)"); A("s_barrier")
        stamp(lbl+".bar")
    def stats_ops(ST,SI,rstd):
        L=[]
        for k,c in enumerate(R16):
            for e in range(2): L.append(f"v_add_f32_dpp v{ST+e}, v{(ST if k else SI)+e}, v{(ST if k else SI)+e} "+dpp(c))
        L.append(f"v_pk_mul_f32 {d(ST)}, {d(ST)}, s[46:47]")
        L.append(f"v_fma_f32 v{ST}, -v{ST+1}, v{ST+1}, v{ST}")
        L.append(f"v_add_f32 v{ST}, |v{ST}|, s45")
        L.append(f"v_rsq_f32 v{rstd}, v{ST}")
        return L
    def rs8(u0,u1,t,Dr):
        for v in range(4): A(f"v_add_f32_dpp v{t+v}, v{Dr+v}, v{Dr+v} "+dpp("row_ror:8",0x3))
        for v in range(4): A(f"v_add_f32_dpp v{t+v}, v{Dr+4+v}, v{Dr+4+v} "+dpp("row_ror:8",0xc))
        A(f"v_add_f32_dpp {u0}, v{t}, v{t} "+dpp("row_shl:4",0x5))
        A(f"v_add_f32_dpp {u1}, v{t+1}, v{t+1} "+dpp("row_shl:4",0x5))
        A(f"v_add_f32_dpp {u0}, v{t+2}, v{t+2} "+dpp("row_shr:4",0xa))
        A(f"v_add_f32_dpp {u1}, v{t+3}, v{t+3} "+dpp("row_shr:4",0xa))
    def att_gather(it,shadow=None):
        QF=T; ST=T+16; CS=T+20; C=T+44; Dr=T+36; lbl=f"L_att{it}"
        def loads():
            A(f"buffer_load_dwordx2 {d(ST)}, {vST}, {sF}, {0 if it else sT0} offen offset:{0x100*it} sc1")
            A(f"buffer_load_dwordx4 {q(QF)}, {vQG}, {sF}, {sB} offen sc1")
            if it==0: A(f"buffer_load_dwordx4 {q(CS)}, {vQG}, {sF}, {sC} offen sc1")
        if shadow: loads(); shadow(); A(f"s_branch {lbl}_in{M[0]}")
        lab(lbl); stamp(f"a{it}.try")
        loads(); spin()
        if shadow: lab(lbl+"_in")
        st=stats_ops(ST,ST,T+18)
        A("s_waitcnt vmcnt(0)" if it else "s_waitcnt vmcnt(0) lgkmcnt(0)")
        stamp(f"a{it}.got")
        A(f"ds_write_b128 {vQR[0]}, {q(QF)}")
        if it==0: A(f"ds_write_b128 {vQR[0]}, {q(CS)} offset:4096")
        for k in range(4): A(f"v_dot2_f32_bf16 v{C}, v{QF+k}, v{ONES}, v{C if k else ST}")
        if it==0:
            for k in range(4): A(f"v_dot2_f32_bf16 v{C}, v{CS+k}, v{ONES}, v{C}")
        A(st[0]); A(st[1])
        if it: A(f"{MF} {q(Dr)}, {q(KF)}, {q(QF)}, 0")
        A(f"v_cmp_u_f32 vcc, v{C}, v{ST+1}")
        A(st[2]); A(st[3])
        if it: A(f"{MF} {q(Dr+4)}, {q(KF+16)}, {q(QF)}, 0")
        if it: mark()
        retry(lbl)
        A(st[4]); A(st[5])
        barrier(it,7)
        stamp(f"a{it}.bar0")
        return st[6:]
    def att_scores(it,st):
        QF=T; ST=T+16; CS=T+20; Dr=T+36; t=T+44; U=T+48; a=T+18
        if it==0:
            for s in range(1,4): A(f"ds_read_b128 {q(CS+4*s)}, {vQR[s]} offset:4096")
        for s in range(1,4): A(f"ds_read_b128 {q(QF+4*s)}, {vQR[s]}")
        if it==0:
            A("s_waitcnt lgkmcnt(3)")
            for s in range(4):
                for tt in range(2): A(f"{MF} {q(Dr+4*tt)}, {q(KF+16*tt+4*s)}, {q(CS+4*s)}, {'0' if s==0 else q(Dr+4*tt)}")
            rs8(vCS0,vCS1,t,Dr)
            for tt in range(2): A(f"{MF} {q(Dr+4*tt)}, {q(KF+16*tt)}, {q(QF)}, 0")
        st=st+[f"v_mul_f32 v{a}, 0x3e0293ee, v{a}",
               f"v_mul_f32 v{a+1}, v{ST+1}, v{a}",
               f"v_pk_mul_f32 {d(ST)}, v[{vCS0[1:]}:{vCS1[1:]}], {d(a)} op_sel:[0,1] op_sel_hi:[1,1]"]
        for x in st[:3]: A(x)
        if it: fill("q0","")
        k=3
        for s in range(1,4):
            A(f"s_waitcnt lgkmcnt({3-s})")
            for tt in range(2):
                A(f"{MF} {q(Dr+4*tt)}, {q(KF+16*tt+4*s)}, {q(QF+4*s)}, {q(Dr+4*tt)}")
                for _ in range(1 if (tt or st[k].startswith("v_rsq")) else 2):
                    if k<len(st): A(st[k]); k+=1
                if k>=len(st): k=len(st); st=st+[""]*4; st[k]=""
        rs8(f"v{U}",f"v{U+1}",t,Dr)
        A(f"v_pk_fma_f32 {d(U)}, {d(U)}, {d(a)}, {d(ST)} op_sel_hi:[1,0,1] neg_lo:[0,0,1] neg_hi:[0,0,1]")
        m=T+50; tmp=T+51; lbl=f"L_sm{it}"
        stamp(f"a{it}.ok")
        A(f"v_exp_f32 v{t}, v{U}"); A(f"v_exp_f32 v{t+1}, v{U+1}")
        A(f"v_max_f32 v{m}, |v{U}|, |v{U+1}|")
        A(f"v_cvt_pk_bf16_f32 v{t}, v{t}, v{t+1}")
        A(f"ds_write2st64_b32 {vPW}, v{t}, {vZ} offset0:0 offset1:4")
        A(f"v_cmp_lt_f32 vcc, s10, v{m}"); retry(lbl+"_max")
        lab(lbl+"_done")
        def cold():
            lab(lbl+"_max")
            A(f"v_max_f32 v{m}, v{U}, v{U+1}")
            A(f"v_max_f32_dpp v{m}, v{m}, v{m} "+dpp("row_ror:4"))
            A(f"v_max_f32_dpp v{tmp}, v{m}, v{m} "+dpp("row_ror:8"))
            A(f"v_max_f32_dpp v{m}, v{m}, v{m} "+dpp("row_ror:8"))
            A(f"v_permlane16_swap_b32 v{m}, v{tmp}")
            A(f"v_max_f32 v{t}, v{m}, v{tmp}"); A(f"v_max_f32 v{m}, v{m}, v{tmp}")
            A(f"v_permlane32_swap_b32 v{m}, v{t}"); A(f"v_max_f32 v{m}, v{m}, v{t}")
            A(f"v_pk_add_f32 {d(U)}, {d(U)}, {d(m)} op_sel_hi:[1,0] neg_lo:[0,1] neg_hi:[0,1]")
            A(f"v_exp_f32 v{U}, v{U}"); A(f"v_exp_f32 v{U+1}, v{U+1}")
            A(f"v_cvt_pk_bf16_f32 v{U}, v{U}, v{U+1}")
            A(f"ds_write2st64_b32 {vPW}, v{U}, v{m} offset0:0 offset1:4")
            A(f"s_branch {lbl}_done{M[0]}")
        COLD.append((M[0],cold))
    def att_pv(it):
        B=T; BA=T+16; LA=T+20; ACC=T+24; m=T+32; al=T+34; Mx=T+36; Ls=T+37; t=T+40; U=T+44; lbl=f"L_pv{it}"
        stamp(f"a{it}.bar1")
        def mm(s,u): A(f"{MF} {q(ACC+4*u)}, {q(VF+8*s+4*u)}, {q(B+4*s)}, {q(ACC+4*u) if s else 0}")
        A(f"ds_read_b128 {q(B)}, {vPF0}"); A(f"ds_read_b32 v{m}, {vPR} offset:1024")
        for s in range(1,4): A(f"ds_read_b128 {q(B+4*s)}, {vPF1 if s&2 else vPF0} offset:{256*s}")
        A(f"ds_read_b128 {q(BA)}, {vPR}")
        A(f"v_mov_b32 v{Mx}, 0")
        if it and o.get("pvpad",0): padsite()
        A("s_waitcnt lgkmcnt(5)")
        mm(0,0); A("s_waitcnt lgkmcnt(3)"); A(f"v_cmp_neq_f32 vcc, 0, v{m}")
        mm(0,1); mm(1,0)
        if it and o.get("pvpad",0): mark()
        retry(lbl+"_mix")
        mm(1,1); A("s_waitcnt lgkmcnt(0)")
        la=lambda: A(f"{MF} {q(LA)}, {q(ONES)}, {q(BA)}, 0")
        l1=lambda: A(f"v_add_f32_dpp v{Ls}, v{LA}, v{LA} "+dpp("row_ror:4"))
        l2=lambda: A(f"v_add_f32_dpp v{Ls}, v{Ls}, v{Ls} "+dpp("row_ror:8"))
        cv=lambda k: A(f"v_cvt_pk_bf16_f32 v{U+k}, v{ACC+2*k}, v{ACC+2*k+1}")
        if o.get("lalast",0):
            mm(2,0); mm(3,0); mm(2,1); mm(3,1); la()
            for k in range(4): cv(k)
            fstore("buffer_store_dwordx4",q(U),vAP4,0); l1(); l2()
        else:
            mm(2,0); mm(3,0); la(); mm(2,1); mm(3,1)
            l1(); cv(0); cv(1); l2(); cv(2); cv(3)
            fstore("buffer_store_dwordx4",q(U),vAP4,0)
        lab(lbl+"_done")
        fstore("buffer_store_dwordx2",d(Mx),vLP,0,0x400*it)
        def cold():
            lab(lbl+"_mix")
            A("s_waitcnt lgkmcnt(0)"); A("s_nop 7")
            for s in range(4): A(f"ds_read_b128 {q(B+4*s)}, {vPB[s]}")
            A(f"{MF} {q(LA)}, {q(ONES)}, {q(BA)}, 0")
            A(f"v_max_f32_dpp v{Mx}, v{m}, v{m} "+dpp("row_ror:4"))
            A(f"v_max_f32_dpp v{Mx}, v{Mx}, v{Mx} "+dpp("row_ror:8"))
            A(f"v_sub_f32 v{al}, v{m}, v{Mx}"); A(f"v_exp_f32 v{al}, v{al}")
            A(f"v_mul_f32 v{Ls}, v{al}, v{LA}")
            A(f"v_add_f32_dpp v{Ls}, v{Ls}, v{Ls} "+dpp("row_ror:4"))
            A(f"v_add_f32_dpp v{Ls}, v{Ls}, v{Ls} "+dpp("row_ror:8"))
            A("s_waitcnt lgkmcnt(0)")
            for s in range(4): mm(s,0); mm(s,1)
            for r in range(0,8,2): A(f"v_pk_mul_f32 {d(ACC+r)}, {d(ACC+r)}, {d(al)} op_sel_hi:[1,0]")
            rs8(f"v{U}",f"v{U+1}",t,ACC)
            A(f"v_cvt_pk_bf16_f32 v{U}, v{U}, v{U+1}")
            fstore("buffer_store_dword",f"v{U}",vAP,0)
            A(f"s_branch {lbl}_done{M[0]}")
        COLD.append((M[0],cold))
    def wo_stage(it,lbl):
        X=T; LM=T+8; Dr=T+12; Mx=T+10; wv=T+11; ACC=T+28; U=T+32; Ls=T+35
        W4=T+36
        stamp(lbl+".ack"); lab(lbl); stamp(lbl+".try")
        A(f"buffer_load_dwordx2 {d(LM)}, {vLG}, {sF}, 0 offen offset:{0x400*it} sc1")
        A(f"buffer_load_dwordx4 {q(X)}, {vAG}, {sF}, 0 offen sc1")
        A(f"buffer_load_dwordx4 {q(X+4)}, {vAG}, {sF}, 0 offen offset:1024 sc1")
        spin()
        sm=lambda k,src=None: A(f"v_add_f32_dpp v{Ls}, v{src or Ls}, v{src or Ls} "+dpp(R16[k]))
        A("s_waitcnt vmcnt(2)")
        A(f"v_cmp_neq_f32 vcc, 0, v{LM}")
        sm(0,LM+1)
        A("s_waitcnt vmcnt(1)")
        A(f"{MF} {q(Dr)}, {q(SEL)}, {q(X)}, 0")
        A("s_waitcnt vmcnt(0)"); stamp(lbl+".got")
        A(f"{MF} {q(Dr)}, {q(SEL)}, {q(X+4)}, {q(Dr)}")
        mark(); retry(lbl+"_chk")
        sm(1)
        sm(2)
        rs4(U,U+1,U+2,Dr)
        lab(lbl+"_sum")
        A(f"v_cvt_pk_bf16_f32 v{U+1}, v{U}, v{U}")
        A(f"ds_write_b16 {vXW}, v{U+1} offset:{L_OB}")
        A(f"v_cmp_u_f32 vcc, v{U}, v{Ls}")
        A(f"v_add_f32_dpp v{U}, v{Ls}, v{Ls} "+dpp(R16[3]))
        def warm():
            lab(lbl+"_chk")
            A(f"v_cmp_u_f32 vcc, v{LM}, v{LM+1}"); retry(lbl); A(f"s_branch {lbl}_mix{M[0]}")
        def cold():
            lab(lbl+"_mix")
            A("s_nop 7")
            for k in range(4): A(f"{MF} {q(Dr+4*k)}, {q(SELU+4*(k&1))}, {q(X+4*(k>>1))}, 0")
            for k in range(4): A(f"v_max_f32_dpp v{Mx}, v{Mx if k else LM}, v{Mx if k else LM} "+dpp(R16[k]))
            A(f"v_mov_b32 v{wv}, v{Mx}"); A(f"v_permlane32_swap_b32 v{Mx}, v{wv}"); A(f"v_max_f32 v{Mx}, v{Mx}, v{wv}")
            A(f"v_sub_f32 v{wv}, v{LM}, v{Mx}"); A(f"v_exp_f32 v{wv}, v{wv}")
            A(f"v_mul_f32 v{Ls}, v{wv}, v{LM+1}")
            for k in range(4):
                for r in range(4):
                    A(f"{'v_mul_f32_dpp' if k==0 else 'v_fmac_f32_dpp'} v{ACC+r}, v{wv}, v{Dr+4*k+r} "+dpp(f"quad_perm:[{k},{k},{k},{k}]"))
            for k in range(3): sm(k)
            rs4(U,U+1,U+2,ACC)
            A(f"v_mov_b32 v{U+1}, v{U}")
            A(f"v_permlane32_swap_b32 v{U}, v{U+1}"); A(f"v_add_f32 v{U}, v{U}, v{U+1}")
            A(f"s_branch {lbl}_sum{M[0]}")
        (COLD if M[0] else WARM).append((M[0],warm)); COLD.append((M[0],cold))
        retry(lbl)
        stamp(lbl+".ok")
        A(f"v_mov_b32 v{Ls}, v{U}")
        A("s_waitcnt lgkmcnt(0)"); A("s_barrier")
        stamp(lbl+".bar")
        if it==0: A(f"ds_read_b32 v15, {vZ} offset:{L_SYNC+16}")
        g=gemv(WO,"O",it,f"v{Ls}"); next(g)
        A(f"v_permlane32_swap_b32 v{Ls}, v{U}"); A(f"v_add_f32 v{Ls}, v{Ls}, v{U}"); A(f"v_rcp_f32 v{Ls}, v{Ls}")
        next(g)
        if it==0:
            A(f"v_readfirstlane_b32 {sN}, v15")
            if o.get("selx") is not None: A(f"s_xor_b32 {sN}, {sN}, {o['selx']}")
            A(f"s_xor_b32 {sR}, {sN}, 0x2000")
        next(g)
        spublish(T+4,2*it)
    def down_stage(it,lbl):
        G=T+4; Uq=T+5; E=T+6; ST=T+8; rs=T+10; X=T+12; Dr=T+16
        P=T+36; SI=T+40; CS=T+44
        pre=o.get("dpipe",(2,))
        def loads():
            A(f"buffer_load_dwordx4 {q(P)}, {vUG}, {sF}, {sA if it else 0} offen sc1")
            A(f"buffer_load_dwordx2 {d(SI)}, {vST}, {sF}, 0 offen offset:{0x100*it+0x80} sc1")
            if it==0: A(f"buffer_load_dwordx4 {q(CS)}, {vUG}, {sF}, {sT0} offen sc1")
        ex=1 if it==0 else 0
        stamp(lbl+".ack")
        for g_ in pre: loads(); wait(g_)
        lab(lbl); stamp(lbl+".try")
        loads(); spin()
        st=stats_ops(ST,SI,rs)
        fl=(2+ex)*len(pre)
        dot=lambda dst,src,acc: A(f"v_dot2_f32_bf16 {dst}, v{src}, v{ONES}, {dst if acc else 0}")
        A(f"s_waitcnt vmcnt({1+ex+fl})"); stamp(lbl+".got")
        dot(f"v{G}",P,0); dot(f"v{Uq}",P+2,0); dot(f"v{G}",P+1,1); dot(f"v{Uq}",P+3,1)
        A(f"s_waitcnt vmcnt({ex+fl})")
        A(st[0]); A(st[1]); A(f"v_cmp_u_f32 vcc, v{G}, v{Uq}")
        A(st[2]); A(st[3])
        A(st[4]); A(st[5]); mark(); retry(lbl)
        A(st[6]); A(st[7])
        if it==0:
            A(f"s_waitcnt vmcnt({fl})")
            dot(vCSG,CS,0); dot(vCSU,CS+2,0); dot(vCSG,CS+1,1); dot(vCSU,CS+3,1)
        for x in st[8:11]: A(x)
        A(f"v_pk_fma_f32 {d(G)}, {d(ST)}, v[{vCSG[1:]}:{vCSU[1:]}], {d(G)} op_sel:[1,0,0] neg_lo:[1,0,0] neg_hi:[1,0,0]")
        A(st[11])
        A(f"v_mul_f32 v{E}, 0xbfb8aa3b, v{G}")
        A(f"v_mul_f32 v{E}, v{E}, v{rs}")
        A(f"v_exp_f32 v{E}, v{E}")
        A(f"v_pk_mul_f32 {d(G)}, {d(G)}, {d(rs)} op_sel_hi:[1,0]")
        A(f"v_add_f32 v{E}, 1.0, v{E}")
        A(f"v_rcp_f32 v{E}, v{E}")
        A(f"v_mul_f32 v{G}, v{G}, v{Uq}")
        A(f"v_mul_f32 v{G}, v{G}, v{E}")
        A(f"v_cvt_pk_bf16_f32 v{E}, v{G}, v{G}")
        A(f"ds_write_b16 {vHW}, v{E} offset:{L_HB}")
        A(f"v_cmp_u_f32 vcc, v{G}, v{G}")
        retry(lbl)
        stamp(lbl+".ok")
        A("s_waitcnt lgkmcnt(0)")
        lab(lbl+"_b")
        A("s_barrier")
        A(f"ds_read_b128 {q(X)}, {vHR} offset:{L_HB}")
        A("s_waitcnt lgkmcnt(0)")
        A(f"{MF} {q(Dr)}, {q(X)}, {q(W2)}, 0"); A(f"{MF} {q(Dr+4)}, {q(X)}, {q(W2+4)}, 0")
        A(f"v_add_f32 v{Dr}, v{Dr}, v{Dr+5}")
        spublish(Dr,2*it+1)

    def bumpE():
        A(f"s_or_b32 s48, s2, {sw}"); A(f"s_cselect_b32 s48, {OOB:#x}, 0"); A(f"s_add_u32 s48, s48, {WS_E:#x}"); A(f"v_mov_b32 v15, {stag}")
        A(f"buffer_store_dword v15, {vZ}, {sW}, s48 offen sc1")
    def chain():
        rid[0]=0
        A("s_mov_b32 s45, 0x3727c5ac")
        run(gemv(WQ,"Q",0))
        stamp("Qpub0")
        if not M[0] and not o.get("exp_nohs"):
            lds_wait(1,1,mask=True)
            A("v_readfirstlane_b32 s44, v15"); A("s_lshr_b32 s44, s44, 16"); A("s_cbranch_scc0 L_slow")
        stamp("B1")
        A(f"v_cmp_gt_u32 vcc, 16, v0"); A(f"v_subrev_u32 {vQP}, {F_Q0-F_Q1:#x}, {vQP}"); A(f"v_cndmask_b32 {vQP}, v13, {vQP}, vcc")
        if o["qwait"]=="ack": A("s_waitcnt vmcnt(0)")
        else: lds_wait(0,o["qwait"])
        def kfrags():
            stamp("qiss")
            lds_wait(0,12)
            stamp("K")
            for s in range(4):
                if s: A(f"v_xor_b32 v15, {64*s}, v7")
                for t in range(2): A(f"ds_read_b128 {q(KF+16*t+4*s)}, v{15 if s else 7} offset:{4096*t}")
        st=att_gather(0,kfrags)
        stamp("qgot0")
        att_scores(0,st)
        barrier(0,2)
        stamp("qg0")
        A(f"s_mov_b32 {sB}, {F_Q1:#x}"); A(f"s_mov_b32 {sT0}, 0x1000")
        hop()
        lds_wait(0,20)
        stamp("V")
        for e in range(8):
            for hh in range(2): A(f"ds_read_b64_tr_b16 {d(VF+4*e+2*hh)}, v8 offset:{8192*(e>>1)+4096*hh+8*(e&1)}")
        att_pv(0)
        stamp("Apub0")
        hop()
        lds_wait(0,24)
        wfrags(WO,L_WO)
        ww=o.get("wwait",28)
        if ww=="ack": A("s_waitcnt vmcnt(0)")
        elif ww>24: lds_wait(0,ww)
        stamp("all")
        for it in range(2):
            wo_stage(it,f"L_wo{it}")
            stamp(f"WOpub{it}")
            if it==0:
                A(f"s_lshr_b32 {sG0}, {sg}, 1"); A(f"s_lshl_b32 {sG0}, {sG0}, 15"); A(f"s_add_u32 {sG0}, {sG0}, {sN}")
                for k,r_ in enumerate((sG1,sG2,sG3)): A(f"s_xor_b32 {r_}, {sG0}, {0x8000*(k+1):#x}")
                if o.get("lateclr",1):
                    A(f"v_readfirstlane_b32 s48, {vSP}"); A("s_andn2_b32 s48, s48, 0x820"); A(f"s_lshl_b32 s49, {sw}, 16"); A("s_add_u32 s48, s48, s49"); A(f"s_add_u32 s48, s48, {WS_S1+0x40000:#x}")
                    A("v_and_b32 v14, 15, v0"); A("v_lshlrev_b32 v14, 2, v14"); A("v_and_b32 v15, 1, v1"); A("v_lshl_add_u32 v14, v15, 11, v14"); A("v_lshrrev_b32 v15, 5, v0"); A("v_lshl_add_u32 v14, v15, 13, v14")
                    A(f"buffer_store_dword {vNAN}, v14, {sW}, s48 offen sc1")
                    A("s_add_u32 s48, s48, 0x40000"); A(f"s_cmp_eq_u32 {sw}, 0"); A(f"s_cselect_b32 s48, s48, {OOB:#x}")
                    A(f"buffer_store_dword {vNAN}, v14, {sW}, s48 offen sc1")
                wfrags(WU,L_WU)
                if o.get("split0",0):
                    wait(o.get("s0a",0))
                    for t in range(3): s0load(t)
            sack(2*it,(2*o.get("lateclr",1)+3*o.get("split0",0)) if it==0 else 0)
            sg_head(f"L_su{it}",2*it)
            run(gemv(WU,"U",it))
            stamp(f"Upub{it}")
            A(f"v_cmp_gt_u32 vcc, 16, v0")
            if it==0:
                A(f"v_add_u32 {vUP}, 0x2000, {vUP}"); A(f"v_cndmask_b32 {vUP}, v13, {vUP}, vcc")
                A(f"ds_read_u16_d16_hi {vCAR}, {vXW} offset:{L_XU}")
                A(f"v_and_b32 v15, 0xfff, {vWR}")
                for t in range(2):
                    for hh in range(2): A(f"ds_read_b64_tr_b16 {d(W2+4*t+2*hh)}, v15 offset:{L_W2+4096*t+2048*hh}")
                A("s_waitcnt lgkmcnt(0)")
            else: A(f"v_cndmask_b32 {vSP}, v13, {vSP}, vcc")
            A(f"s_cmp_eq_u32 {sw}, {o.get('dw',3)}"); A(f"s_cbranch_scc0 L_dn{it}_b{M[0]}")
            fwait("D")
            down_stage(it,f"L_dn{it}")
            stamp(f"Dpub{it}")
            if it==0:
                fstore("buffer_store_dword",vNAN,vAP,0)
                bumpE()
                sack(1,2)
                sg_head("L_sq1",1)
                run(gemv(WQ,"Q",1))
                stamp("Q.pub1")
                fwait("A")
                stamp("a1.ack")
                att_scores(1,att_gather(1))
                hop(); fill("p0",""); A("s_waitcnt lgkmcnt(0)"); fill("p1",""); A("s_barrier"); fill("p2","")
                att_pv(1)
                stamp("A.pub1")
                fwait("W")
    chain()
    A("L_last:")
    A(f"s_xor_b32 s48, {snb}, {sw}"); A(f"s_or_b32 s48, s48, {sg}"); A("s_cbranch_scc1 L_fin")
    sack(3)
    sg_head("L_sf",3)
    A("L_fin:")
    if o.get("pad"):
        stamp("end") if not stamps else None
        A("s_waitcnt lgkmcnt(0)")
        if o["pad"][1]=="none": A("s_mov_b32 s72, s70")
        if len(o["pad"])>2: A("s_sub_u32 s72, s72, s70"); A(f"s_mul_i32 s72, s72, {o['pad'][2]}"); A("s_add_u32 s72, s72, s70")
        if len(o["pad"])>3: A(f"s_cmp_eq_u32 s2, {o['pad'][3]}"); A("s_cbranch_scc0 L_exit")
        A(f"s_add_u32 s72, s72, {o['pad'][0]}")
        A("L_pad:"); A("s_memrealtime s[74:75]"); A("s_waitcnt lgkmcnt(0)"); A("s_sub_u32 s76, s74, s72"); A("s_cmp_lt_i32 s76, 0"); A("s_cbranch_scc1 L_pad")
    if stamps: stamp("end"); dump(sw)
    A("s_endpgm")
    emit(WARM)
    A("L_hotend:")
    A("L_giveup:")
    A("s_waitcnt vmcnt(0)")
    if stamps: A("s_or_b32 s3, s3, 0x100")
    bumpE()
    for wd in (2,7): A(f"ds_add_u32 {vZ}, {vONE} offset:{L_SYNC+4*wd}")
    A(f"s_xor_b32 s48, {snb}, {sw}"); A(f"s_or_b32 s48, s48, {sg}"); A("s_cbranch_scc1 L_fin")
    A(f"buffer_store_short {vNAN}, {vOUT}, {sL}, 0 offen"); A("s_branch L_fin")
    A("L_hvec:")
    A("v_and_b32 v13, 31, v0"); A("v_lshlrev_b32 v14, 2, v13"); A("v_lshlrev_b32 v15, 7, v13")
    A("v_mov_b32 v16, s42"); A("s_mov_b64 exec, 1")
    A(f"buffer_store_dword v16, {vZ}, {sW}, {sR} offen sc1")
    A("s_mov_b64 exec, -1")
    A("L_hvec1:")
    A(f"buffer_load_dword v17, v14, {sW}, {sA} offen sc1")
    A(f"buffer_load_dword v18, v15, {sW}, {sN} offen sc1")
    A("v_mov_b32 v13, 1")
    A(f"s_sub_u32 {sspin}, {sspin}, 1"); A("s_cbranch_scc1 L_hsig")
    A("s_waitcnt vmcnt(0)")
    A("v_and_b32 v17, 0xffffffe7, v17"); A("v_mov_b32 v13, 0x10001")
    A("v_cmp_ne_u32 vcc, s42, v17"); A("s_cbranch_vccz L_hsig")
    A(f"v_xor_b32 v19, {stag}, v18"); A("v_cmp_lt_u32 vcc, 7, v19"); A("s_cbranch_vccnz L_hvec1")
    A("v_cmp_ne_u32 vcc, s42, v18"); A("s_cbranch_vccz L_hvec1")
    A(f"s_add_u32 {sB}, {sB}, {WS_SLOW:#x}"); A(f"s_add_u32 {sT1}, {sT1}, {WS_SLOW:#x}")
    A("s_mov_b64 exec, s[50:51]"); A(f"buffer_store_dwordx4 v[8:11], v3, {sW}, {sT1} offen sc1"); A("s_mov_b64 exec, -1")
    for k in range(2): A(f"buffer_store_dwordx4 v[8:11], {vL16}, {sW}, {sB} offen offset:{1024*k} sc1")
    A(f"v_mov_b32 v16, {stag}"); A("v_mov_b32 v13, 1")
    A("s_waitcnt vmcnt(0)")
    A("s_mov_b64 exec, 1")
    A(f"buffer_store_dword v16, {vZ}, {sW}, {sR} offen offset:4 sc1")
    A("s_mov_b64 exec, -1")
    A("L_hvec2:")
    A(f"buffer_load_dword v18, v15, {sW}, {sN} offen offset:4 sc1")
    A(f"s_sub_u32 {sspin}, {sspin}, 1"); A("s_cbranch_scc1 L_hsig")
    A("s_waitcnt vmcnt(0)")
    A(f"v_cmp_ne_u32 vcc, {stag}, v18"); A("s_cbranch_vccnz L_hvec2")
    A("L_hsig:")
    A("s_mov_b64 exec, 1"); A(f"ds_add_u32 {vZ}, v13 offset:{L_SYNC+4}")
    hstamp(2)
    A("s_branch L_hok")
    if stamps:
        A("L_hdump:"); A("s_mov_b64 exec, -1"); dump("4"); A("s_endpgm")
        A("L_ldump:"); ws_srd(); dump("5"); A("s_endpgm")
    A("L_slow:")
    A(f"s_add_u32 s40, s40, {WS_SLOW:#x}"); A("s_addc_u32 s41, s41, 0")
    M[0]="s"; chain(); A("s_branch L_last"); emit(COLD)
    txt=HEADER+f"; @launch grid=(256,1,1) block=(512,1,1) lds={LDS_BYTES}\n"
    txt+=f""".amdgcn_target "amdgcn-amd-amdhsa--gfx950"
.text
.globl {NAME}_kernel
.p2align 12
.fill 832, 4, 0xbf810000
.p2align 8
.type {NAME}_kernel,@function
{NAME}_kernel:
"""+A.text()+f""".section .rodata,"a"
.p2align 6
.amdhsa_kernel {NAME}_kernel
  .amdhsa_next_free_vgpr 256
  .amdhsa_next_free_sgpr 102
  .amdhsa_accum_offset 256
  .amdhsa_group_segment_fixed_size 0
  .amdhsa_kernarg_size 96
  .amdhsa_user_sgpr_count 2
  .amdhsa_user_sgpr_kernarg_segment_ptr 1
  .amdhsa_system_sgpr_workgroup_id_x 1
  .amdhsa_float_denorm_mode_32 3
.end_amdhsa_kernel
"""
    return txt, names
def labels(txt):
    import subprocess,re
    open("_h.s","w").write(txt.replace(".fill 832, 4",".fill 1024, 4"))
    subprocess.run(["clang","-x","assembler","-target","amdgcn-amd-amdhsa","-mcpu=gfx950","-c","_h.s","-o","_h.o"],check=True)
    out=subprocess.run(["llvm-readelf","-s","-W","_h.o"],capture_output=True,text=True).stdout
    L={m.group(2):int(m.group(1),16) for m in re.finditer(r"^\s*\d+: ([0-9a-f]+) .* (\S+)$",out,re.M)}
    return {k:v-L[NAME+"_kernel"] for k,v in L.items()}
def gen(stamps=False, opts=None):
    o=dict(opts or {})
    if o.get("warm",1)==0: o["_hops"]=None; return gen1(stamps,o)
    L=labels(gen1(stamps,o)[0])
    c=sorted((v,int(k[2:])) for k,v in L.items() if k.startswith("HC")); end=L["L_hotend"]
    pick=[]; page=[]; shift=20; last=None
    for i,(a,k) in enumerate(c):
        shift+=44 if o.get("bral",1) else 0
        nxt=(c[i+1][0] if i+1<len(c) else end)+shift+8
        if (a+shift)//4096 != nxt//4096:
            page.append(k); pick.append(k); shift=((a+shift)//4096+1)*4096-a+4; last=a+shift
        elif last is None or nxt-last>1040:
            pick.append(k); shift+=4; last=a+shift
    h=(len(pick)+1)//2
    o["_hops"]=[pick[:h][::-1],pick[h:][::-1]]; o["_page"]=page
    if o.get("bral",1):
        o["_pads"]={}
        for k in sorted(int(x[2:]) for x in L if x.startswith("BR")):
            o["_pads"][k]=((o.get("brat",4)-labels(gen1(stamps,o)[0])[f"BR{k}"])%32)//4
    return gen1(stamps,o)
if __name__=="__main__":
    txt,names=gen(stamps=False)
    open(sys.argv[1] if len(sys.argv)>1 else "cdna_kernels/"+NAME+".s","w").write(txt)
```

```python
import sys
from emit import Asm
NAME="interleave_layers__sliding_block_cached__glu_gated_swiglu__decode"
HEADER=open("cdna_kernels/"+NAME+".s.ref").read().split("; Override launch")[0]

WS_PR=0x1a0000; WS_FL=0x1c0000; WS_E=0x1c9000; WS_PF=0x1cc000; WS_F=0x200000; FSZ=0x20000; WS_SLOW=0x100000; WS_DBG=0x400000; WS_S1=0x80000
F_ATT=0; F_Q1=0x8000; F_U=0x9000; F_LAM=0xC000; F_ST=0xC800; F_Q0=0x10000; F_ST0=0x12000
OOB=0x3ff00000; TAGK=0x9E376001; NREP=16
L_WQ=0; L_WO=0x4000; L_WU=0x8000; L_W2=0xC000; L_XB=0xE000; L_ONES=0xE100; L_OB=0xE200; L_SYNC=0xE380; L_PB=0xE800; L_ZERO=0xE300; L_HB=0xE400; L_XU=0xE600
L_K=0x10000; L_V=0x18000; L_OBUF=0; L_QB=0x20000; LDS_BYTES=0x22000
pX,pK,pV,pQ,pO,_,p1,p3,p2,pOUT,_,pWS=[f"s[{i}:{i+1}]" for i in range(4,28,2)]
sL,sP,sW,sF="s[28:31]","s[32:35]","s[36:39]","s[40:43]"
sg,sc,skq,snb,sw,stag,sdbg,sspin,sT0,sT1,sN,sR,sA,sB,sC,sD="s52 s53 s54 s55 s56 s57 s58 s59 s60 s61 s62 s63 s64 s65 s66 s67".split()
sHI="s[68:69]"; STAMP0=70
sTG,sTF,sG1,sG2,sG3,sG0="s4","s5","s6","s7","s8","s9"
def q(b): return f"v[{b}:{b+3}]"
def d(b): return f"v[{b}:{b+1}]"
WQ,WO,WU,W2,KF,VF=16,32,48,64,72,104
SEL,SELU,MASK,ONES,PB=136,140,148,156,160
vPB=[f"v{160+k}" for k in range(4)]; vQR=[f"v{164+k}" for k in range(4)]; vPF0,vPF1,vAP4="v168","v169","v170"; vXK=["v171","v172","v173"]; vOK=["v148","v149","v150"]
SELT=152
(vSG,vSP,vQP,vL16,vST,vSTP,vAP,vLP,vAG,vLG,vUP,vUG,vXW,vXR,vOR,vPW,vPR,vHW,vHR,vCAR,vCS0,vCS1,vCSG,vCSU,vOUT,vWR,vNAN,vQG)=[f"v{i}" for i in range(176,204)]
vZ,vONE,vXS,vSG0,vSP0="v5","v6","v4","v10","v11"
T=204
SPIN=1<<16
MF="v_mfma_f32_16x16x32_bf16"

def gen1(stamps=False, opts=None):
    o=dict(nt="nt",ptnt="nt",D=24,qwait="ack",fwait="ack",fwaitD=2,swait3=9,swait="far",copies=4,early=1,mask=0)
    o.update(opts or {})
    A=Asm(); A.timed=o.get("timed",1); nt=o["nt"]; D=o["D"]
    names=[]; M=[""]
    def stamp(name):
        if o.get("pad") and name==o["pad"][1]: A("s_memrealtime s[72:73]")
        if not stamps: return
        if o.get("only") is not None:
            if name not in o["only"]: return
        elif name in ("WOpub1","Upub1","setup") or "." in name: return
        if name not in names: names.append(name)
        k=STAMP0+2*names.index(name); assert k+1<=101
        A(f"{'s_memtime' if o.get('cyc') else 's_memrealtime'} s[{k}:{k+1}]")
    def hstamp(k):
        if stamps: A(f"s_memrealtime s[{STAMP0+2*k}:{STAMP0+2*k+1}]")
    def dpp(ctrl,bank=0xf): return f"{ctrl} row_mask:0xf bank_mask:{bank:#x}"
    def fstore(op,data,addr,soff,off=0):
        A(f"{op} {data}, {addr}, {sF}, {soff} offen offset:{off}{' sc1' if M[0] else ''}")
    rid=[0]
    def spin(site=True):
        rid[0]+=1
        if stamps:
            A(f"s_mov_b32 s3, {rid[0]}")
            if rid[0]<=10: A(f"s_add_u32 {sdbg}, {sdbg}, {1<<(3*(rid[0]-1))}")
        A(f"s_sub_u32 {sspin}, {sspin}, 1"); A("s_cbranch_scc1 L_giveup")
        if site: hop(); padsite()
    pid=[0]
    def padsite():
        if not M[0]:
            pid[0]+=1
            n_=o.get("_pads",{}).get(pid[0],0)
            if n_>2: A(f"s_branch PD{pid[0]}"); A.raw(f".fill {n_-1}, 4, 0xbf800000"); A(f"PD{pid[0]}:")
            else:
                for _ in range(n_): A("s_nop 0")
    def mark():
        if not M[0]: A(f"BR{pid[0]}:")
    hops=o.get("_hops"); hid=[0]
    def hop():
        if M[0]: return
        hid[0]+=1; k=hid[0]
        A(f"HC{k}:")
        if "_hops" not in o: return
        if k in o.get("_page",()): A(f"s_branch H{k}"); A.raw(".p2align 12")
        for ch in hops or []:
            if k in ch:
                i=ch.index(k); A(f"H{k}:"); A(f"s_cbranch_execz {'H%d'%ch[i+1] if i+1<len(ch) else 'L_exit'}")
    def lab(l): A(f"{l}{M[0]}:")
    def retry(l): A(f"s_cbranch_vccnz {l}{M[0]}")
    def head(l):
        lab(l)
        if o["mask"]: A("s_mov_b64 vcc, -1"); lab(l+"_m")
    def mon():
        if o["mask"]: A("s_mov_b64 exec, vcc")
    def moff():
        if o["mask"]: A("s_mov_b64 exec, -1")
    def mretry(l): retry(l+"_m" if o["mask"] else l)
    def rs4(dst,t0,t1,Dr):
        A(f"v_add_f32_dpp v{t0}, v{Dr}, v{Dr} "+dpp("row_ror:8",0x3))
        A(f"v_add_f32_dpp v{t1}, v{Dr+1}, v{Dr+1} "+dpp("row_ror:8",0x3))
        A(f"v_add_f32_dpp v{t0}, v{Dr+2}, v{Dr+2} "+dpp("row_ror:8",0xc))
        A(f"v_add_f32_dpp v{t1}, v{Dr+3}, v{Dr+3} "+dpp("row_ror:8",0xc))
        A(f"v_add_f32_dpp v{dst}, v{t0}, v{t0} "+dpp("row_shl:4",0x5))
        A(f"v_add_f32_dpp v{dst}, v{t1}, v{t1} "+dpp("row_shr:4",0xa))
    R16=["quad_perm:[1,0,3,2]","quad_perm:[2,3,0,1]","row_ror:4","row_ror:8"]
    def ws_srd():
        A("s_add_u32 s36, s26, 0x1fffff"); A("s_addc_u32 s37, s27, 0"); A("s_and_b32 s36, s36, 0xffe00000")
    wid=[0]
    def lds_wait(word,n,mask=False):
        wid[0]+=1
        A(f"L_w{wid[0]}:")
        if word==0 and o.get("psleep"): A(f"s_sleep {o['psleep']}")
        A(f"ds_read_b32 v15, {vZ} offset:{L_SYNC+4*word}"); A("s_waitcnt lgkmcnt(0)")
        if mask: A("v_and_b32 v14, 0xffff, v15")
        A(f"v_cmp_gt_i32 vcc, {n}, v{14 if mask else 15}"); A(f"s_cbranch_vccnz L_w{wid[0]}")
    def fill(key,dflt):
        for ch in o.get("f_"+key,dflt) if o.get("fill",0) else "":
            A("v_mov_b32 v14, v14" if ch=="v" else f"s_nop {ch}")
    def lds_arrive(word):
        A("s_mov_b64 exec, 1"); A(f"ds_add_u32 {vZ}, {vONE} offset:{L_SYNC+4*word}"); A("s_mov_b64 exec, -1")
    def barrier(it,word):
        if it==0: lds_arrive(word); lds_wait(word,4)
        else: A("s_waitcnt lgkmcnt(0)"); A("s_barrier")
    def dump(slot):
        A("s_waitcnt vmcnt(0) lgkmcnt(0)")
        A(f"s_lshl_b32 s48, s2, 3"); A(f"s_add_u32 s48, s48, {slot}"); A("s_lshl_b32 s48, s48, 8"); A(f"s_add_u32 s48, s48, {WS_DBG:#x}")
        A("v_mov_b32 v14, s48")
        for k,r in enumerate([f"s{STAMP0+2*k}" for k in range(16)]+[sspin,"s44",sN,"s3",sdbg]):
            A(f"v_mov_b32 v15, {r}"); A(f"buffer_store_dword v15, v14, {sW}, 0 offen offset:{4*k}")
        if o.get("cal") and slot==sw:
            A("s_mov_b32 s12, 0")
            A("L_cal0:"); A("s_memrealtime s[4:5]"); A("s_waitcnt lgkmcnt(0)")
            A("L_cal1:"); A("s_memrealtime s[6:7]"); A("s_memtime s[8:9]"); A("s_waitcnt lgkmcnt(0)"); A("s_cmp_eq_u32 s6, s4"); A("s_cbranch_scc1 L_cal1")
            A("v_mov_b32 v16, s6"); A("v_mov_b32 v17, s8"); A(f"buffer_store_dwordx2 v[16:17], v14, {sW}, s12 offen offset:96")
            A("s_sleep 9"); A("s_add_u32 s12, s12, 8"); A("s_cmp_lt_u32 s12, 160"); A("s_cbranch_scc1 L_cal0")

    stamp("start")
    if o.get("pad"): A("s_memrealtime s[70:71]")
    A(f"v_readfirstlane_b32 {sw}, v0"); A(f"v_mov_b32 {vZ}, 0")
    A(f"s_cmp_eq_u32 {sw}, 320"); A("s_cbranch_scc1 L_init")
    A("L_args:")
    A("s_load_dwordx16 s[4:19], s[0:1], 0"); A("s_load_dwordx8 s[20:27], s[0:1], 64")
    A("s_cmp_ge_u32 s2, 256"); A("s_cbranch_scc1 L_exit")
    if stamps: A("s_mov_b32 s3, 0"); A(f"s_mov_b32 {sdbg}, 0")
    A(f"s_lshr_b32 {sw}, {sw}, 6"); A("v_and_b32 v0, 63, v0")
    A(f"s_and_b32 {sg}, s2, 7"); A(f"s_lshr_b32 {sc}, s2, 3")
    A(f"s_and_b32 {skq}, {sc}, 3"); A(f"s_lshr_b32 {snb}, {sc}, 2")
    A("s_mov_b32 s31, 0x20000"); A("s_mov_b32 s38, 0x500000"); A("s_mov_b32 s39, s31"); A("s_mov_b32 s35, s31")
    A(f"v_lshlrev_b32 {vL16}, 4, v0"); A("v_lshrrev_b32 v1, 4, v0")
    A(f"s_cmp_ge_u32 {sw}, 1"); A("s_cbranch_scc1 L_roles")
    A("v_lshlrev_b32 v8, 1, v1"); A("v_and_b32 v6, 7, v0"); A("v_xor_b32 v6, v6, v8"); A("v_lshlrev_b32 v6, 4, v6")
    A("v_lshrrev_b32 v7, 3, v0"); A("v_lshl_add_u32 v9, v7, 13, v6")
    A(f"v_mov_b32 v3, {5-(D+3)//4}")
    for u in range(1,4): A(f"v_add_u32 v{11+u}, {u*(65536-1024):#x}, v9")
    A("v_bfe_u32 v2, v0, 1, 1"); A("v_lshl_add_u32 v2, v1, 1, v2"); A("v_bfe_u32 v10, v0, 2, 2"); A("v_lshl_add_u32 v2, v2, 2, v10"); A("v_and_b32 v10, 1, v0"); A("v_lshl_add_u32 v2, v2, 1, v10"); A("v_lshlrev_b32 v2, 2, v2")
    A(f"s_lshl_b32 {sT1}, {skq}, 8"); A("s_movk_i32 s34, 1024"); A(f"s_mov_b32 m0, {L_XB:#x}")
    A(f"s_lshl_b32 {sB}, {skq}, 20"); A(f"s_lshl_b32 {sT0}, {sg}, 10"); A(f"s_add_u32 {sB}, {sB}, {sT0}"); A(f"s_lshl_b32 {sC}, {snb}, 7"); A(f"s_add_u32 {sB}, {sB}, {sC}"); A(f"s_xor_b32 {sB}, {sB}, 0x80")
    A("v_and_b32 v4, 15, v0"); A("v_xor_b32 v4, v4, v8"); A("v_lshlrev_b32 v4, 4, v4"); A("v_lshl_add_u32 v4, v1, 8, v4"); A("v_xor_b32 v11, 0x80, v4")
    A(f"s_lshl_b32 {sA}, {sg}, 24"); A(f"s_lshl_b32 {sT0}, {sc}, 15"); A(f"s_add_u32 {sA}, {sA}, {sT0}"); A(f"s_add_u32 {sA}, {sA}, {61440*256}")
    n=[0]
    DD=o.get("DD",[D]*6); cur=[D]
    def tile(ptr,size,base,lds,rs,groups,voffs,first=False):
        D=DD[n[0]]
        if (D+3)//4!=(cur[0]+3)//4: A(f"v_add_u32 v3, {(cur[0]+3)//4-(D+3)//4}, v3")
        cur[0]=D
        n[0]+=1; lbl=f"L_ld{n[0]}"
        if size is not None: A(f"s_mov_b32 s30, {size}")
        A(f"s_mov_b32 {sN}, {sc}"); A(f"s_add_u32 {sR}, {sc}, {groups}")
        A(f"s_mov_b64 s[28:29], {ptr}")
        A(f"{lbl}:")
        A(f"s_and_b32 s44, {sN}, {groups-1}"); A("s_lshl_b32 s45, s44, 12"); A(f"s_add_u32 m0, s45, {lds:#x}")
        if rs: A(f"s_mul_i32 s45, s44, {32*rs}")
        A(f"s_add_u32 s45, s45, {base}")
        for u in range(4):
            A(f"buffer_load_dwordx4 {voffs[u&1]}, {sL}, s45 offen offset:{1024*u} {nt} lds")
            if rs and u<3: A(f"s_add_u32 s45, s45, {8*rs-1024}")
        A("v_add_u32 v3, 1, v3"); A(f"s_add_u32 {sN}, {sN}, 1")
        if not first or D<20:
            A(f"s_waitcnt vmcnt({D-4})"); A(f"ds_write_b32 {vZ}, v3 offset:{L_SYNC}")
        A(f"s_cmp_lg_u32 {sN}, {sR}"); A(f"s_cbranch_scc1 {lbl}")
    assert D>=20
    n[0]=1
    A("s_mov_b32 s30, 0x400000")
    if not o.get("hfirst",0): A("s_barrier")
    hstamp(4); A("s_waitcnt lgkmcnt(0)")
    A(f"s_mov_b64 s[32:33], {pX}"); A(f"s_mov_b64 s[28:29], {pQ}")
    if o.get("hfirst",0): A("s_barrier")
    A(f"buffer_load_dword v2, {sP}, {sT1} offen lds")
    for gr in range(4):
        A(f"s_movk_i32 m0, {L_WQ+4096*gr:#x}")
        if gr: A(f"s_add_u32 {sB}, {sB}, 0x40000")
        for u in range(4): A(f"buffer_load_dwordx4 v{11+u if u else 9}, {sL}, {sB} offen offset:{1024*u} {nt} lds")
    hstamp(1)
    hstamp(6)
    tile(pK,0x8000000,sA,L_K,0,8,("v4","v11"))
    hstamp(7)
    A("s_branch L_loader2")
    A("L_init:")
    A("v_lshlrev_b32 v2, 2, v0"); A(f"ds_write_b32 v2, {vZ} offset:{L_SYNC-1280}"); A("s_waitcnt lgkmcnt(0)"); A("s_branch L_args")
    A("L_roles:")
    A(f"s_cmp_eq_u32 {sw}, 1"); A("s_cbranch_scc1 L_helper")
    A(f"s_cmp_ge_u32 {sw}, 6"); A("s_cbranch_scc1 L_probe")
    if o.get("exp_nocomp"): A("s_endpgm")
    A(f"s_sub_u32 {sw}, {sw}, 2")
    A(f"s_cmp_ge_u32 {sc}, 3"); A("s_cbranch_scc1 L_nopf")
    A("s_getpc_b64 s[32:33]"); A("s_and_b32 s32, s32, 0xfffffc00"); A(f"s_mov_b32 s34, L_hotend-{NAME}_kernel+{o.get('pfx',1024)}")
    A(f"s_lshl_b32 {sT0}, {sc}, 2"); A(f"s_add_u32 {sT0}, {sT0}, {sw}"); A(f"s_lshl_b32 {sT0}, {sT0}, 10")
    A(f"buffer_load_dwordx4 v[252:255], {vL16}, {sP}, {sT0} offen offset:1024")
    A("L_nopf:")
    A("s_barrier"); A("s_branch L_setup")
    A("L_probe:")
    if o.get("exp_noprobe"): A("s_endpgm")
    A(f"s_xor_b32 s51, {sw}, {sc}"); A("s_and_b32 s51, s51, 1"); A("s_lshl_b32 s49, s51, 13")
    A(f"s_lshl_b32 s48, {sg}, 14"); A("s_add_u32 s48, s48, s49"); A(f"s_lshl_b32 s49, {sc}, 8"); A("s_add_u32 s48, s48, s49"); A(f"s_add_u32 s48, s48, {WS_PR:#x}")
    A("s_barrier"); A("s_waitcnt lgkmcnt(0)")
    ws_srd()
    A("s_memtime s[44:45]"); A("s_load_dword s50, s[36:37], s48"); A("s_waitcnt lgkmcnt(0)"); A("s_memtime s[46:47]")
    A("s_branch L_probe2")
    A("L_exit:"); A("s_endpgm")
    A("L_helper:")
    if o.get("exp_nohelp")==2: A("s_endpgm")
    A("s_setprio 3")
    for k in range(8,12): A(f"v_mov_b32 v{k}, -1")
    A(f"v_and_b32 v2, {NREP-1}, v0"); A("v_lshlrev_b32 v2, 7, v2")
    A(f"s_lshl_b32 {sA}, {sg}, 11"); A(f"s_add_u32 {sA}, {sA}, {WS_PF:#x}")
    A(f"s_lshl_b32 {sT1}, {sg}, 17"); A(f"s_add_u32 {sT1}, {sT1}, {WS_F:#x}"); A(f"s_lshl_b32 {sC}, {sc}, 11"); A(f"s_add_u32 {sB}, {sT1}, {sC}")
    if o.get("trim",1): A(f"s_cmp_gt_u32 {sc}, 25"); A(f"s_cselect_b32 {sB}, {OOB-WS_SLOW:#x}, {sB}")
    A(f"s_andn2_b32 s44, 1, {snb}"); A("s_lshl_b32 s44, s44, 7"); A(f"s_lshl_b32 s45, {skq}, 2"); A("s_add_u32 s44, s44, s45"); A(f"s_lshr_b32 s45, {snb}, 1"); A("s_add_u32 s44, s44, s45"); A("s_lshl_b32 s44, s44, 4"); A(f"s_add_u32 s44, s44, {F_Q0:#x}")
    A(f"s_lshl_b32 s45, {skq}, 5"); A(f"s_add_u32 s45, s45, {F_ST0-256:#x}")
    A("v_and_b32 v3, 7, v0"); A("v_lshl_add_u32 v3, v3, 8, s44"); A("v_bfe_u32 v4, v0, 3, 1"); A("v_lshl_add_u32 v3, v4, 12, v3")
    A("v_cmp_gt_u32 vcc, 16, v0"); A(f"v_add_u32 v4, s45, {vL16}")
    A(f"s_cmp_eq_u32 {snb}, 0"); A("s_cselect_b32 s50, 18, 16"); A("s_bfm_b64 s[50:51], s50, 0"); A("v_cndmask_b32 v3, v4, v3, vcc")
    A("s_mov_b64 exec, s[50:51]")
    if not o.get("hfirst",0): A("s_barrier")
    hstamp(4)
    A("s_waitcnt lgkmcnt(0)")
    ws_srd()
    A(f"buffer_store_dwordx4 v[8:11], v3, {sW}, {sT1} offen")
    A("s_mov_b64 exec, -1")
    for k in range(2):
        if k==1 and o.get("hfirst",0)==2: A("s_barrier")
        A(f"buffer_store_dwordx4 v[8:11], {vL16}, {sW}, {sB} offen offset:{1024*k}")
    if o.get("hfirst",0)==1: A("s_barrier")
    A(f"s_add_u32 s40, s36, {WS_E:#x}"); A("s_addc_u32 s41, s37, 0"); A(f"s_load_dword {stag}, s[40:41], 0")
    A(f"buffer_load_dword v12, v2, {sW}, {sA} offen sc1 nt")
    hstamp(6)
    if o.get("exp_nohelp"): A("s_endpgm")
    A("s_branch L_helper2")
    A("L_probe2:")
    A("s_mov_b64 exec, 1"); A("s_waitcnt lgkmcnt(0)")
    A("s_sub_u32 s44, s46, s44"); A("s_min_u32 s44, s44, 0x3fff"); A("s_sub_u32 s45, 0x3fff, s44"); A("s_cmp_eq_u32 s51, 1"); A("s_cselect_b32 s44, s45, s44"); A("s_add_u32 s44, s44, 0x100000")
    A("v_mov_b32 v14, s44"); A(f"ds_add_u32 {vZ}, v14 offset:{L_SYNC+20}"); A("s_waitcnt lgkmcnt(0)")
    if hops:
        A("s_mov_b64 exec, 0"); A(f"s_cmp_eq_u32 {sw}, 6"); A(f"s_cbranch_scc1 H{hops[0][0]}"); A(f"s_branch H{hops[1][0]}")
    else: A("s_endpgm")
    A("L_loader2:")
    tile(pV,None,sA,L_V,0,8,("v4","v11"))
    hstamp(8)
    A("v_lshl_add_u32 v9, v7, 10, v6"); A("v_mul_u32_u24 v10, 3584, v7"); A("v_add_u32 v10, v10, v6")
    A(f"s_lshl_b32 {sT0}, {sg}, 2"); A(f"s_add_u32 {sT0}, {sT0}, {skq}"); A(f"s_lshl_b32 {sB}, {sT0}, 17"); A(f"s_add_u32 {sB}, {sB}, {sC}")
    tile(pO,0x400000,sB,L_WO,1024,4,("v9","v9"))
    A(f"s_bitcmp1_b32 {snb}, 0"); A(f"s_cselect_b64 {p1}, {p3}, {p1}")
    if o.get("bal",1):
        A(f"s_lshr_b32 s46, {sg}, 2"); A("s_lshl_b32 s46, s46, 1"); A(f"s_sub_u32 {sT0}, {sT0}, s46")
        A(f"s_lshr_b32 s47, {snb}, 1"); A(f"s_sub_u32 {sT1}, {sT0}, {skq}"); A(f"s_add_u32 {sT1}, {sT1}, s47"); A(f"s_lshl_b32 {sT1}, {sT1}, 7")
        A(f"s_mul_i32 {sB}, {skq}, {128*3584}"); A(f"s_add_u32 {sB}, {sB}, {sT1}")
        A(f"s_and_b32 s46, {sg}, 3"); A("s_lshl_b32 s46, s46, 2")
        A("s_add_u32 s47, s47, s46"); A("s_cmp_ge_u32 s47, 14"); A(f"s_cselect_b32 s30, 0, {512*3584:#x}")
        tile(p1,None,sB,L_WU,3584,4,("v10","v10"))
        A(f"s_add_u32 s47, {skq}, s46"); A("s_cmp_ge_u32 s47, 14"); A(f"s_cselect_b32 s30, 0, {512*3584:#x}")
    else:
        A(f"s_mul_i32 {sB}, {skq}, {128*3584}"); A(f"s_lshl_b32 {sT1}, {sg}, 9"); A(f"s_add_u32 {sB}, {sB}, {sT1}"); A(f"s_lshr_b32 {sT1}, {snb}, 1"); A(f"s_lshl_b32 {sT1}, {sT1}, 7"); A(f"s_add_u32 {sB}, {sB}, {sT1}")
        A(f"s_cmp_eq_u32 {sg}, 7"); A(f"s_cselect_b32 s30, 0, {512*3584:#x}")
        tile(p1,None,sB,L_WU,3584,4,("v10","v10"))
    A(f"s_lshl_b32 {sB}, {sT0}, 16"); A(f"s_add_u32 {sB}, {sB}, {sC}")
    tile(p2,None,sB,L_W2,1024,2,("v9","v9"))
    hstamp(2)
    A("s_mov_b64 exec, 1")
    for k in range((cur[0]+3)//4-2,-1,-1):
        A("v_add_u32 v3, 1, v3"); A(f"s_waitcnt vmcnt({4*k})"); A(f"ds_write_b32 {vZ}, v3 offset:{L_SYNC}")
    A("s_mov_b64 exec, -1")
    hstamp(3)
    A("s_waitcnt lgkmcnt(0)")
    A("s_branch L_ldump" if stamps and not o.get("cyc") and not o.get("nohd") else "s_endpgm")
    A("L_helper2:")
    A(f"s_getreg_b32 {sD}, hwreg(HW_REG_XCC_ID)"); A(f"s_and_b32 {sD}, {sD}, 7")
    if o.get("force_slow"): A(f"s_and_b32 {sD}, {sc}, 1")
    A(f"s_add_u32 s40, s36, {sA}"); A("s_addc_u32 s41, s37, 0")
    A(f"s_lshl_b32 {sC}, {sc}, 2"); A(f"s_add_u32 {sC}, {sC}, {sA}")
    A(f"s_lshl_b32 {sN}, {sg}, 12"); A(f"s_add_u32 {sN}, {sN}, {WS_FL:#x}"); A(f"s_lshl_b32 {sR}, {sc}, 7"); A(f"s_add_u32 {sR}, {sR}, {sN}")
    A(f"s_mov_b32 {sspin}, {SPIN}"); A(f"v_mov_b32 {vONE}, 1")
    A("s_waitcnt vmcnt(1)")
    A(f"ds_write_b32 {vZ}, {vONE} offset:{L_SYNC+24}")
    A("s_mov_b32 s48, 0x200000")
    lds_wait(5,"s48")
    A("v_readfirstlane_b32 s48, v15"); A(f"s_cmp_gt_u32 s48, {0x200000+0x3fff-80:#x}"); A("s_cselect_b32 s49, 8, 0"); A(f"s_cmp_gt_u32 s48, {0x200000+0x3fff+80:#x}"); A("s_cselect_b32 s49, 16, s49")
    if stamps: A(f"s_sub_u32 {sdbg}, s48, {0x200000+0x3fff-10000:#x}")
    A(f"s_add_u32 {stag}, {stag}, {TAGK:#x}"); A(f"s_and_b32 {stag}, {stag}, 0xffffffe0")
    A(f"s_or_b32 s42, {stag}, {sD}"); A("s_mov_b32 s43, s42"); A("s_or_b32 s49, s49, s42"); A("v_mov_b32 v13, s49")
    A(f"s_mov_b64 exec, {(1<<NREP)-1:#x}")
    hstamp(1)
    A(f"buffer_store_dword v13, v2, {sW}, {sC} offen")
    A("s_mov_b64 exec, -1")
    if not o.get("exp_notouch"):
        for k in range(2): A(f"buffer_load_dwordx4 v[{20+4*k}:{23+4*k}], {vL16}, {sW}, {sB} offen offset:{1024*k} sc1 {o['ptnt']}")
    A("s_mov_b32 s48, 0"); A(f"s_mov_b32 {sC}, {NREP}")
    A("s_waitcnt vmcnt(0)" if o.get("exp_notouch") else "s_waitcnt vmcnt(2)")
    A("L_hpoll:")
    lds_wait(0,"s48")
    A("v_readfirstlane_b32 s48, v15")
    A("s_load_dwordx16 s[4:19], s[40:41], 0"); A("s_load_dwordx16 s[20:35], s[40:41], 64")
    A("s_waitcnt lgkmcnt(0)")
    A("s_xor_b64 s[44:45], s[4:5], s[42:43]")
    for k in range(1,16): A(f"s_xor_b64 s[46:47], s[{4+2*k}:{5+2*k}], s[42:43]"); A("s_or_b64 s[44:45], s[44:45], s[46:47]")
    A("s_or_b32 s44, s44, s45"); A("s_andn2_b32 s44, s44, 24")
    A("s_cbranch_scc0 L_hfast")
    if stamps: A(f"s_sub_u32 {sspin}, {sspin}, 1")
    A("s_add_u32 s40, s40, 128"); A("s_addc_u32 s41, s41, 0")
    A("s_add_u32 s48, s48, 1"); A("s_min_u32 s48, s48, 30")
    A(f"s_sub_u32 {sC}, {sC}, 1"); A(f"s_cmp_lg_u32 {sC}, 0"); A("s_cbranch_scc1 L_hpoll")
    A("s_branch L_hvec")
    A("L_hfast:")
    A("s_mov_b64 exec, 1"); A("v_mov_b32 v13, 0x10001"); A(f"ds_add_u32 {vZ}, v13 offset:{L_SYNC+4}")
    hstamp(2)
    for k in range(5,36): A(f"s_add_u32 s4, s4, s{k}")
    A("s_lshl_b32 s5, s42, 5"); A("s_sub_u32 s4, s4, s5"); A("s_cmp_gt_u32 s4, 256"); A("s_cselect_b32 s49, 16, 0")
    A("L_hok:")
    A("s_and_b32 s49, s49, 16"); A("s_lshl_b32 s49, s49, 9"); A("v_mov_b32 v13, s49"); A(f"ds_write_b32 {vZ}, v13 offset:{L_SYNC+16}")
    A("s_mov_b64 exec, -1")
    A(f"s_lshl_b32 s4, {sg}, 14"); A(f"s_lshl_b32 s5, {skq}, 11"); A("s_add_u32 s4, s4, s5"); A(f"s_lshl_b32 s5, {snb}, 8"); A("s_add_u32 s4, s4, s5")
    A("v_and_b32 v3, 15, v0"); A("v_lshlrev_b32 v3, 4, v3"); A("v_and_b32 v7, 1, v1"); A("v_lshl_add_u32 v3, v7, 17, v3"); A("v_lshrrev_b32 v7, 5, v0"); A("v_lshl_add_u32 v3, v7, 13, v3")
    A(f"s_lshr_b32 s6, {snb}, 1"); A("s_lshl_b32 s6, s6, 14"); A(f"s_and_b32 s7, {snb}, 1"); A("s_lshl_b32 s7, s7, 12"); A("s_add_u32 s6, s6, s7")
    A(f"s_lshl_b32 s7, {sg}, 2"); A(f"s_add_u32 s7, s7, {skq}"); A("s_lshl_b32 s7, s7, 6"); A("s_add_u32 s6, s6, s7"); A(f"s_add_u32 s6, s6, {WS_S1:#x}")
    A("v_and_b32 v4, 3, v0"); A("v_lshlrev_b32 v4, 4, v4"); A("v_bfe_u32 v7, v0, 2, 1"); A("v_lshl_add_u32 v4, v7, 11, v4"); A("v_bfe_u32 v7, v0, 3, 1"); A("v_lshl_add_u32 v4, v7, 13, v4"); A("v_lshl_add_u32 v4, v1, 16, v4")
    lds_wait(0,o.get("clrat",23))
    A(f"buffer_store_dwordx4 v[8:11], v3, {sW}, s4 offen sc1")
    A("s_bfm_b64 exec, 32, 0")
    A(f"buffer_store_dwordx4 v[8:11], v4, {sW}, s6 offen sc1")
    A("L_hdone:")
    A("s_waitcnt vmcnt(0) lgkmcnt(0)")
    hstamp(3)
    A("s_branch L_hdump" if stamps and not o.get("cyc") and not o.get("nohd") and not o.get("nohd2") else "s_endpgm")

    A("L_setup:")
    A("v_and_b32 v2, 3, v0"); A("v_bfe_u32 v3, v0, 2, 2")
    A("v_and_b32 v10, 1, v1"); A("v_lshl_add_u32 v10, v2, 1, v10"); A("v_lshl_add_u32 v10, v10, 2, v3"); A("v_bfe_u32 v9, v0, 3, 2")
    A(f"s_lshl_b32 {sT0}, {skq}, 2"); A(f"s_add_u32 {sD}, {sT0}, {sw}")
    A(f"s_lshl_b32 {sT0}, {sD}, 6"); A(f"v_lshl_add_u32 {vOUT}, v10, 1, {sT0}")
    A("s_mov_b32 s30, 1024")
    A("s_waitcnt lgkmcnt(0)")
    stamp("k.arg")
    ws_srd()
    A(f"s_add_u32 s40, s36, {WS_E:#x}"); A("s_addc_u32 s41, s37, 0")
    A(f"s_mov_b64 s[28:29], {pOUT}")
    A("s_mov_b32 s68, 0"); A("s_mov_b32 s69, -1"); A(f"s_mov_b32 {sspin}, {SPIN}")
    A(f"v_mov_b32 {vONE}, 1"); A(f"v_mov_b32 {vNAN}, -1")
    A("v_and_b32 v12, 15, v0"); A(f"v_mov_b32 v13, {OOB:#x}")
    A("v_cmp_gt_u32 s[62:63], 32, v0")
    A("v_and_b32 v14, 1, v0"); A("v_lshlrev_b32 v14, 4, v14"); A("v_mov_b32 v15, 0xffff"); A("v_lshlrev_b32 v14, v14, v15")
    A("v_lshrrev_b32 v15, 1, v12")
    for k in range(8): A(f"v_cmp_eq_u32 s[{4+2*k}:{5+2*k}], {k}, v15")
    for k in range(8): A(f"v_cndmask_b32 v{MASK+k}, 0, v14, s[{4+2*k}:{5+2*k}]")
    A("v_lshrrev_b32 v15, 3, v12"); A("v_sub_u32 v15, v1, v15")
    for u in range(2): A(f"v_cmp_eq_u32 s[{4+2*u}:{5+2*u}], {2*u}, v15")
    for k in range(4):
        A(f"v_mov_b32 v{ONES+k}, 0x3f803f80"); A(f"v_or_b32 v{SEL+k}, v{MASK+k}, v{MASK+4+k}"); A(f"v_and_b32 v{SEL+k}, v{ONES+k}, v{SEL+k}")
    for u in range(2):
        for k in range(4): A(f"v_cndmask_b32 v{SELU+4*u+k}, 0, v{SEL+k}, s[{4+2*u}:{5+2*u}]")
    A("v_and_b32 v14, 1, v0"); A("v_bfe_u32 v15, v0, 2, 1"); A("v_lshl_add_u32 v15, v15, 1, v14"); A("v_mov_b32 v14, 1.0")
    for k in range(4): A(f"v_cmp_eq_u32 s[{4+2*k}:{5+2*k}], {k}, v15")
    for k in range(4): A(f"v_cndmask_b32 v{SELT+k}, 0, v14, s[{4+2*k}:{5+2*k}]")
    A("v_lshrrev_b32 v14, 5, v0"); A("v_lshlrev_b32 v14, 14, v14"); A("v_lshl_add_u32 v14, v9, 11, v14"); A("v_and_b32 v15, 7, v0"); A("v_lshl_add_u32 v14, v15, 4, v14")
    A(f"s_lshl_b32 s48, {sD}, 7"); A(f"s_and_b32 s49, {sg}, 1"); A("s_lshl_b32 s49, s49, 17"); A("s_add_u32 s48, s48, s49"); A(f"v_add_u32 {vSG0}, s48, v14")
    A(f"s_lshl_b32 s48, {sg}, 14"); A(f"s_lshl_b32 s49, {skq}, 11"); A("s_add_u32 s48, s48, s49")
    A(f"s_lshl_b32 s49, {snb}, 8"); A("s_add_u32 s48, s48, s49"); A(f"s_lshl_b32 s49, {sw}, 6"); A("s_add_u32 s48, s48, s49")
    A(f"v_lshl_add_u32 v14, v12, 2, s48"); A("v_and_b32 v7, 1, v1"); A("v_lshrrev_b32 v8, 5, v0"); A("v_lshl_add_u32 v14, v7, 17, v14"); A(f"v_lshl_add_u32 {vSP0}, v8, 13, v14")
    A("v_bfe_u32 v14, v0, 2, 1"); A("v_lshlrev_b32 v14, 3, v14"); A("v_lshl_add_u32 v14, v2, 4, v14"); A("v_lshl_add_u32 v14, v9, 1, v14"); A(f"v_add_u32 {vXS}, s49, v14")
    A(f"s_and_b32 s48, {sg}, 1"); A("s_lshl_b32 s48, s48, 2"); A(f"s_add_u32 s48, s48, {skq}"); A("s_lshl_b32 s48, s48, 3"); A(f"s_add_u32 s48, s48, {sw}"); A("s_lshl_b32 s48, s48, 11"); A(f"v_add_u32 {vSG}, s48, {vL16}")
    A(f"s_lshr_b32 s48, {snb}, 1"); A("s_lshl_b32 s48, s48, 14"); A(f"s_and_b32 s49, {snb}, 1"); A("s_lshl_b32 s49, s49, 12"); A("s_add_u32 s48, s48, s49")
    A(f"s_lshr_b32 s49, {sw}, 1"); A("s_lshl_b32 s49, s49, 11"); A("s_add_u32 s48, s48, s49"); A(f"s_and_b32 s49, {sw}, 1"); A("s_lshl_b32 s49, s49, 5"); A("s_add_u32 s48, s48, s49")
    A(f"s_lshl_b32 s49, {sg}, 2"); A(f"s_add_u32 s49, s49, {skq}"); A("s_lshl_b32 s49, s49, 6"); A("s_add_u32 s48, s48, s49")
    A("v_lshl_add_u32 v14, v12, 1, s48"); A("v_lshl_add_u32 v14, v7, 16, v14"); A(f"v_lshl_add_u32 {vSP}, v8, 13, v14")
    A(f"s_lshl_b32 s48, {sw}, 10"); A(f"v_add_u32 {vQG}, s48, {vL16}")
    A(f"s_load_dword {stag}, s[40:41], 0")
    A(f"s_and_b32 s50, {snb}, 1"); A("s_xor_b32 s48, s50, 1"); A("s_lshl_b32 s48, s48, 2"); A(f"s_add_u32 s48, s48, {sw}"); A("s_lshl_b32 s48, s48, 9")
    A(f"s_lshl_b32 s49, {skq}, 2"); A(f"s_lshr_b32 s51, {snb}, 1"); A("s_add_u32 s49, s49, s51"); A("s_lshl_b32 s49, s49, 4"); A("s_add_u32 s48, s48, s49"); A(f"s_add_u32 s48, s48, {F_Q0:#x}")
    A("v_lshrrev_b32 v14, 3, v12"); A("v_lshlrev_b32 v14, 8, v14"); A("v_and_b32 v15, 7, v0"); A("v_lshl_add_u32 v14, v15, 1, v14"); A("v_lshl_add_u32 v14, v1, 12, v14"); A("v_add_u32 v14, s48, v14")
    A(f"v_cndmask_b32 {vQP}, v13, v14, s[62:63]")
    A("s_lshl_b32 s48, s51, 10"); A(f"s_lshl_b32 s49, {sw}, 8"); A("s_add_u32 s48, s48, s49"); A("s_lshl_b32 s49, s50, 3"); A("s_add_u32 s48, s48, s49"); A(f"s_lshl_b32 s49, {skq}, 1"); A("s_add_u32 s48, s48, s49"); A(f"s_add_u32 s48, s48, {F_U:#x}")
    A("v_lshl_add_u32 v14, v12, 4, s48"); A("v_lshl_add_u32 v14, v1, 12, v14"); A(f"v_cndmask_b32 {vUP}, v13, v14, s[62:63]")
    A(f"s_lshl_b32 s48, {skq}, 10"); A(f"s_add_u32 s48, s48, {F_U:#x}"); A(f"v_add_u32 {vUG}, s48, {vL16}")
    A("v_lshlrev_b32 v14, 3, v12"); A(f"v_add_u32 {vST}, {F_ST:#x}, v14")
    A(f"s_lshl_b32 s49, {skq}, 8"); A(f"s_add_u32 s49, s49, {F_LAM:#x}"); A("v_lshrrev_b32 v15, 5, v0"); A("v_lshl_add_u32 v14, v15, 7, v14"); A(f"v_add_u32 {vLG}, s49, v14")
    A(f"s_lshl_b32 s48, {sD}, 3"); A(f"s_add_u32 s48, s48, {F_ST:#x}"); pass
    A("v_and_b32 v15, 0x2f, v0"); A("v_cmp_eq_u32 vcc, 0, v15"); A("v_lshl_add_u32 v14, v1, 2, s48"); A(f"v_cndmask_b32 {vSTP}, v13, v14, vcc")
    A(f"v_cmp_eq_u32 vcc, {sw}, v0")
    A(f"s_lshl_b32 s48, {sw}, 11"); A(f"s_lshl_b32 s49, {sc}, 6"); A("s_add_u32 s48, s48, s49"); A("v_and_b32 v14, 60, v0"); A("v_add_u32 v14, s48, v14"); A(f"v_lshl_add_u32 {vAP}, v2, 13, v14")
    A(f"s_lshl_b32 s48, {sw}, 1"); A("s_add_u32 s48, s48, s50"); A("s_lshl_b32 s48, s48, 2"); A(f"s_add_u32 s48, s48, {skq}"); A("s_lshl_b32 s48, s48, 2"); A("s_add_u32 s48, s48, s51"); A("s_lshl_b32 s48, s48, 3"); A(f"s_add_u32 s48, s48, {F_LAM:#x}")
    A("v_mov_b32 v14, s48"); A(f"v_cndmask_b32 {vLP}, v13, v14, vcc")
    A(f"s_lshl_b32 s48, {sD}, 11"); A(f"v_add_u32 {vAG}, s48, {vL16}")
    A(f"s_lshl_b32 s49, {sw}, 6"); A("v_lshrrev_b32 v9, 2, v0")
    A("v_and_b32 v14, 1, v2"); A("v_and_b32 v15, 1, v1"); A("v_lshl_add_u32 v14, v14, 1, v15"); A("v_lshlrev_b32 v14, 4, v14"); A("v_lshrrev_b32 v15, 1, v2"); A("v_lshl_add_u32 v14, v15, 3, v14"); A("v_lshl_add_u32 v14, v3, 1, v14")
    A(f"v_add_u32 {vXW}, s49, v14")
    A("v_cmp_eq_u32 vcc, 1, v3")
    A(f"v_lshl_add_u32 {vOR}, v1, 4, s49")
    A("v_xor_b32 v14, 18, v1"); A("v_lshlrev_b32 v14, 4, v14"); A(f"v_cndmask_b32 {vXR}, {vOR}, v14, vcc")
    CH=o.get("chain","")
    for k in range(3):
        if "Q" in CH: A(f"v_xor_b32 {vXK[k]}, {64*(k+1)}, {vXR}")
        if "O" in CH: A(f"v_xor_b32 {vOK[k]}, {64*(k+1)}, {vOR}")
    A("v_lshlrev_b32 v15, 6, v2"); A(f"v_xor_b32 v15, v15, {vOR}")
    if "Q" not in CH: A(f"v_cndmask_b32 {vXR}, v15, v14, vcc")
    if "O" not in CH: A(f"v_mov_b32 {vOR}, v15")
    A("v_lshlrev_b32 v14, 6, v1"); A("v_lshl_add_u32 v14, v2, 4, v14"); A(f"v_add_u32 v14, {L_PB}, v14")
    A(f"v_mov_b32 {vPF0}, v14"); A(f"v_xor_b32 {vPF1}, 0x80, v14")
    A(f"s_lshl_b32 s48, {sw}, 8"); A("v_lshl_add_u32 v15, v3, 2, v14"); A("v_add_u32 v15, s48, v15"); A("s_and_b32 s48, s49, 0x80"); A(f"v_xor_b32 {vPW}, s48, v15")
    A("v_lshl_add_u32 v14, v3, 8, v14"); A("v_and_b32 v15, 8, v0"); A("v_lshlrev_b32 v15, 4, v15"); A(f"v_xor_b32 {vPR}, v14, v15")
    for k in range(4): A(f"v_cmp_eq_u32 s[{4+2*k}:{5+2*k}], {k}, v3")
    A(f"v_cndmask_b32 {vAP4}, v13, {vAP}, s[4:5]")
    A(f"v_mov_b32 v15, {L_ZERO}")
    for k in range(4): A(f"v_cndmask_b32 {vPB[k]}, v15, {vPR}, s[{4+2*k}:{5+2*k}]")
    A(f"ds_write_b32 v15, {vZ}"); A(f"ds_write_b32 v15, {vZ} offset:4"); A(f"ds_write_b32 v15, {vZ} offset:8"); A(f"ds_write_b32 v15, {vZ} offset:12")
    A("v_lshrrev_b32 v14, 5, v0"); A("v_lshlrev_b32 v14, 6, v14"); A("v_lshl_add_u32 v14, v3, 4, v14"); A("v_and_b32 v15, 1, v1"); A("v_lshl_add_u32 v14, v15, 3, v14"); A("v_lshl_add_u32 v14, v2, 1, v14")
    A("s_mov_b32 s48, 0"); A(f"v_add_u32 {vHW}, s48, v14")
    A(f"v_lshlrev_b32 {vHR}, 4, v1")
    if "D" not in CH: A("v_and_b32 v14, 1, v0"); A(f"v_lshl_add_u32 {vHR}, v14, 6, {vHR}")
    A("v_bfe_u32 v15, v0, 3, 2"); A(f"v_xor_b32 v15, {sw}, v15"); A("v_lshlrev_b32 v15, 5, v15"); A("v_lshl_add_u32 v14, v9, 7, v15"); A("v_lshl_add_u32 v14, v2, 3, v14")
    A(f"s_lshl_b32 s48, {sw}, 12"); A(f"v_add_u32 {vWR}, s48, v14")
    A("v_lshlrev_b32 v14, 2, v0"); A(f"ds_write_b32 v14, v{ONES} offset:{L_ONES}"); A(f"ds_write_b32 v14, v{ONES} offset:{L_XU+256}")
    A("v_and_b32 v14, 7, v0")
    A("v_lshlrev_b32 v14, 1, v14"); A("v_xor_b32 v14, v14, v1"); A("v_lshlrev_b32 v14, 4, v14"); A("v_lshl_add_u32 v14, v12, 8, v14")
    A(f"s_lshl_b32 s48, {sw}, 13"); A(f"s_add_u32 s48, s48, {L_K:#x}"); A("v_add_u32 v7, s48, v14"); A("v_xor_b32 v7, s49, v7")
    A(f"s_lshl_b32 s48, {sw}, 1"); A("v_lshrrev_b32 v14, 1, v2"); A("v_add_u32 v14, s48, v14"); A("v_and_b32 v15, 7, v9"); A("v_xor_b32 v14, v14, v15"); A("v_lshlrev_b32 v14, 5, v14")
    A("v_lshl_add_u32 v14, v9, 8, v14"); A("v_and_b32 v15, 1, v0"); A("v_lshl_add_u32 v14, v15, 4, v14"); A(f"v_add_u32 v8, {L_V:#x}, v14")
    A("s_waitcnt vmcnt(0) lgkmcnt(0)")
    A(f"v_cndmask_b32 {vOUT}, v13, {vOUT}, s[62:63]")
    A(f"s_add_u32 {stag}, {stag}, {TAGK:#x}"); A(f"s_and_b32 {sTG}, {stag}, 0x1fff"); A(f"s_or_b32 {sTG}, {sTG}, 0x2000"); A(f"s_lshl_b32 {sTF}, {sTG}, 16")
    A(f"s_lshl_b32 s48, {sg}, 17"); A(f"s_add_u32 s48, s48, {WS_F:#x}"); A("s_add_u32 s40, s36, s48"); A("s_addc_u32 s41, s37, 0"); A(f"s_mov_b32 s42, {FSZ:#x}"); A("s_mov_b32 s43, 0x20000")
    A(f"s_mov_b32 {sA}, 0x2000"); A(f"s_mov_b32 {sB}, {F_Q0:#x}"); A(f"s_mov_b32 {sC}, {F_Q0+0x1000:#x}"); A(f"s_mov_b32 {sT0}, {F_ST0-F_ST:#x}")
    A(f"v_add_u32 {vQR[0]}, {L_QB:#x}, {vQG}")
    for k in range(1,4): A(f"v_xor_b32 {vQR[k]}, {1024*k}, {vQR[0]}")
    A("s_mov_b32 s46, 0x3b000000"); A("s_mov_b32 s47, s46")
    A(f"s_mov_b32 s10, {o.get('smB',0x42000000):#x}")
    A("s_mov_b32 s12, 0x000f000f"); A("s_mov_b32 s13, s12")
    for k in range(1,4): A(f"s_lshl_b64 s[{12+2*k}:{13+2*k}], s[12:13], {4*k}")
    def wfrags(dst,lds):
        for s in range(4):
            if s: A(f"v_xor_b32 v15, {4096*s}, {vWR}")
            for hh in range(2): A(f"ds_read_b64_tr_b16 {d(dst+4*s+2*hh)}, {'v15' if s else vWR} offset:{lds+2048*hh}")
    stamp("setup")
    if o.get("exp_ldone"): lds_wait(0,o["exp_ldone"]); stamp("ldone")
    lds_wait(0,4)
    stamp("wq")
    A(f"ds_read_u16_d16_hi {vCAR}, {vXS} offset:{L_XB}")
    wfrags(WQ,L_WQ)
    hop()
    lds_wait(6,1)
    A(f"v_and_b32 {vCAR}, 0xffff0000, {vCAR}")

    WARM=[]; COLD=[]
    def emit(blocks):
        for m_,f in blocks: M[0]=m_; f()
        M[0]=""
    G=T+24
    def xstat():
        return [f"v_mul_f32 v{G}, {vCAR}, {vCAR}", f"v_mov_b32 v{G+1}, {vCAR}", f"v_permlane16_swap_b32 v{G}, v{G+1}", f"v_add_f32 v{G}, v{G}, v{G+1}"]+\
               [f"v_add_f32_dpp v{G}, v{G}, v{G} "+dpp(c) for c in R16]
    def gemv(W,kind,it,scale=None,xs=None):
        X=T; Dr=T+4
        A(f"ds_read_b128 {q(X)}, {vOR if kind=='O' else vXR} offset:{dict(O=L_OB,Q=L_XB,U=L_XU)[kind]}")
        if kind!="O":
            first=(kind,it)==("Q",0)
            for k,x in enumerate(xs):
                A(x)
                if k==0: A(f"s_cmp_eq_u32 {snb}, {0 if first else sw}"); A(f"s_cselect_b32 s48, {sT0 if first else 0}, {OOB:#x}")
            fstore("buffer_store_dword",f"v{G}",vSTP,"s48",0x80*(2*it+(kind=='U')))
        yield
        A("s_waitcnt lgkmcnt(0)")
        for s in range(4): A(f"{MF} {q(Dr+4*s)}, {q(X)}, {q(W+4*s)}, 0")
        yield
        A(f"v_add_f32 v{Dr}, v{Dr}, v{Dr+5}"); A(f"v_add_f32 v{Dr}, v{Dr}, v{Dr+10}")
        if scale: A(f"v_mul_f32 v{Dr}, v{Dr}, {scale}")
        A(f"v_fmac_f32 v{Dr}, v{Dr+15}, {scale}" if scale else f"v_add_f32 v{Dr}, v{Dr}, v{Dr+15}")
        if kind!="O":
            A(f"v_cvt_pk_bf16_f32 v{Dr}, v{Dr}, v{Dr}")
            fstore("buffer_store_short",f"v{Dr}",vQP if kind=="Q" else vUP,0)
        yield
    def run(g):
        for _ in g: pass
    def wait(f):
        if int(f): A(f"s_sleep {int(f)}")
        if f!=int(f): A(f"s_nop {int((f-int(f))*16)-1}")
    def fwait(k):
        f=o.get("fwait"+k,o.get("fwait"+k[0],o["fwait"]))
        if f=="ack": A("s_waitcnt vmcnt(0)")
        else: wait(f)
    def spublish(reg,hop_):
        if hop_==0:
            A(f"v_cvt_pk_bf16_f32 v{reg}, {sTF}, v{reg}")
            A(f"buffer_store_dword v{reg}, {vSP0}, {sW}, 0 offen sc1")
        else:
            A(f"v_cvt_pk_bf16_f32 v{reg}, v{reg}, v{reg}")
            A(f"buffer_store_short v{reg}, {vSP}, {sW}, {sR} offen sc1")
    X0=T+28
    def s0load(t): A(f"buffer_load_dwordx4 {q(X0+4*t)}, {vSG0}, {sW}, {(sG1,sG2,sG3,sG0)[t]} offen sc1")
    def sack(hop_,extra=0):
        sw_=o.get(f"swait{hop_}",o["swait"])
        if sw_=="far": A(f"s_waitcnt vmcnt({extra})")
        else: wait(sw_)
    def sg_head(lbl,hop_):
        X=T; Dr=T+16; U=T+20; C=T+21
        stamp(lbl+".ack")
        if hop_==0:
            X=X0; m0_=o.get("mask0",0)
            if o.get("split0",0):
                s0load(3); A(f"s_branch {lbl}_in{M[0]}")
            elif m0_: A("s_mov_b64 vcc, -1")
            if o.get("back0"): A(f"s_branch {lbl}_f{M[0]}")
            lab(lbl); stamp(lbl+".try")
            if o.get("back0"): wait(o["back0"]); lab(lbl+"_f")
            if m0_: A("s_mov_b64 exec, vcc")
            for t in range(4): s0load(t)
            if m0_: A("s_mov_b64 exec, -1")
            spin()
            lab(lbl+"_in")
            for t in range(4):
                A(f"s_waitcnt vmcnt({3-t})")
                if t==3: stamp(lbl+".got")
                A(f"{MF} {q(Dr)}, {q(SELT)}, {q(X+4*t)}, {q(Dr) if t else 0}")
                A(f"v_bitop3_b32 v{C+1}, v{X+4*t}, v{X+4*t+1}, {sTG} bitop3:0x7e")
                A(f"v_bitop3_b32 v{C+2}, v{X+4*t+2}, v{X+4*t+3}, {sTG} bitop3:0x7e")
                A(f"v_or3_b32 v{C}, v{C+1}, v{C+2}, {'v%d'%C if t else 0}")
            A(f"v_cmp_ne_u16 vcc, 0, v{C}")
            mark(); retry(lbl)
            A(f"v_add_f32_dpp v{U}, v{Dr}, v{Dr} "+dpp("row_ror:8",0x3))
            A(f"v_add_f32_dpp v{U}, v{Dr+1}, v{Dr+1} "+dpp("row_ror:8",0xc))
        else:
            X=T+28
            def loads():
                A(f"buffer_load_dwordx4 {q(X)}, {vSG}, {sW}, {sN} offen sc1")
                A(f"buffer_load_dwordx4 {q(X+4)}, {vSG}, {sW}, {sN} offen offset:1024 sc1")
            pre=o.get(f"spipe{hop_}",o.get("spipe",()))
            for g_ in pre: loads(); A(f"s_sleep {g_}")
            bk=o.get(f"back{hop_}")
            if bk: A(f"s_branch {lbl}_f{M[0]}")
            lab(lbl); stamp(lbl+".try")
            if bk: wait(bk); lab(lbl+"_f")
            loads()
            spin()
            A(f"s_waitcnt vmcnt({1+2*len(pre)})")
            A(f"{MF} {q(Dr)}, {q(SEL)}, {q(X)}, 0")
            A(f"s_waitcnt vmcnt({2*len(pre)})")
            stamp(lbl+".got")
            A(f"{MF} {q(Dr)}, {q(SEL)}, {q(X+4)}, {q(Dr)}")
            A(f"v_max_u32 v{C}, v{X}, v{X+4}"); A(f"v_cmp_eq_u32 vcc, -1, v{C}"); mark(); retry(lbl)
            rs4(U,C,C+1,Dr)
        A(f"v_cvt_pk_bf16_f32 v{U}, 0, v{U}")
        A(f"v_add_f32 v{U}, v{U}, {vCAR}")
        A(f"v_cvt_pk_bf16_f32 v{U}, 0, v{U}")
        if hop_<3: A(f"ds_write_b16_d16_hi {vXW if hop_ else vXS}, v{U} offset:{L_XB if hop_==1 else L_XU}")
        if hop_==3: A(f"buffer_store_short_d16_hi v{U}, {vOUT}, {sL}, 0 offen")
        if hop_: A(f"v_cmp_u_f32 vcc, v{U}, v{U}")
        if hop_==3: retry(lbl); return
        xs=[x.replace(vCAR,f"v{U}") for x in xstat()]
        for x in xs[:3]: A(x)
        if hop_: retry(lbl)
        stamp(lbl+".ok")
        A(xs[3]); A(f"v_mov_b32 {vCAR}, v{U}"); A(f"s_add_u32 {sN}, {sN}, {0x40000 if hop_ else WS_S1:#x}")
        npre=o.get("xpre",5)
        for x in xs[4:npre]: A(x)
        A("s_waitcnt lgkmcnt(0)"); A("s_barrier")
        stamp(lbl+".bar")
        return xs[npre:]
    def stats_ops(ST,SI,rstd):
        L=[]
        for k,c in enumerate(R16):
            for e in range(2): L.append(f"v_add_f32_dpp v{ST+e}, v{(ST if k else SI)+e}, v{(ST if k else SI)+e} "+dpp(c))
        L.append(f"v_pk_mul_f32 {d(ST)}, {d(ST)}, s[46:47]")
        L.append(f"v_fma_f32 v{ST}, -v{ST+1}, v{ST+1}, v{ST}")
        L.append(f"v_add_f32 v{ST}, |v{ST}|, s45")
        L.append(f"v_rsq_f32 v{rstd}, v{ST}")
        return L
    def rs8(u0,u1,t,Dr):
        for v in range(4): A(f"v_add_f32_dpp v{t+v}, v{Dr+v}, v{Dr+v} "+dpp("row_ror:8",0x3))
        for v in range(4): A(f"v_add_f32_dpp v{t+v}, v{Dr+4+v}, v{Dr+4+v} "+dpp("row_ror:8",0xc))
        A(f"v_add_f32_dpp {u0}, v{t}, v{t} "+dpp("row_shl:4",0x5))
        A(f"v_add_f32_dpp {u1}, v{t+1}, v{t+1} "+dpp("row_shl:4",0x5))
        A(f"v_add_f32_dpp {u0}, v{t+2}, v{t+2} "+dpp("row_shr:4",0xa))
        A(f"v_add_f32_dpp {u1}, v{t+3}, v{t+3} "+dpp("row_shr:4",0xa))
    def att_gather(it,shadow=None):
        QF=T; ST=T+16; CS=T+20; C=T+44; Dr=T+36; lbl=f"L_att{it}"
        def loads():
            A(f"buffer_load_dwordx2 {d(ST)}, {vST}, {sF}, {0 if it else sT0} offen offset:{0x100*it} sc1")
            A(f"buffer_load_dwordx4 {q(QF)}, {vQG}, {sF}, {sB} offen sc1")
            if it==0: A(f"buffer_load_dwordx4 {q(CS)}, {vQG}, {sF}, {sC} offen sc1")
        if shadow: loads(); shadow(); A(f"s_branch {lbl}_in{M[0]}")
        lab(lbl); stamp(f"a{it}.try")
        loads(); spin()
        if shadow: lab(lbl+"_in")
        st=stats_ops(ST,ST,T+18)
        A("s_waitcnt vmcnt(0)" if it else "s_waitcnt vmcnt(0) lgkmcnt(0)")
        stamp(f"a{it}.got")
        A(f"ds_write_b128 {vQR[0]}, {q(QF)}")
        if it==0: A(f"ds_write_b128 {vQR[0]}, {q(CS)} offset:4096")
        for k in range(4): A(f"v_dot2_f32_bf16 v{C}, v{QF+k}, v{ONES}, v{C if k else ST}")
        if it==0:
            for k in range(4): A(f"v_dot2_f32_bf16 v{C}, v{CS+k}, v{ONES}, v{C}")
        A(st[0]); A(st[1])
        if it: A(f"{MF} {q(Dr)}, {q(KF)}, {q(QF)}, 0")
        A(f"v_cmp_u_f32 vcc, v{C}, v{ST+1}")
        A(st[2]); A(st[3])
        if it: A(f"{MF} {q(Dr+4)}, {q(KF+16)}, {q(QF)}, 0")
        if it: mark()
        retry(lbl)
        A(st[4]); A(st[5])
        barrier(it,7)
        stamp(f"a{it}.bar0")
        return st[6:]
    def att_gather1():
        QF=T; ST=T+16; SI=T+46; C=T+44; Dr=T+36; a=T+18; lbl="L_att1"
        loadQ=lambda: A(f"buffer_load_dwordx4 {q(QF)}, {vQG}, {sF}, {sB} offen sc1")
        wait(o.get("await",1))
        lab(lbl)
        A(f"buffer_load_dwordx2 {d(SI)}, {vST}, {sF}, 0 offen offset:256 sc1")
        spin()
        A("s_waitcnt vmcnt(1)"); stamp("a1.ack"); loadQ()
        st=stats_ops(ST,SI,a)
        A("s_waitcnt vmcnt(1)")
        A(st[0]); A(st[1]); A(f"v_cmp_u_f32 vcc, v{SI}, v{SI+1}")
        for x in st[2:6]: A(x)
        retry(lbl)
        for x in st[6:]+scale_ops(): A(x)
        lab(lbl+"_q")
        A("s_waitcnt vmcnt(0)"); stamp("a1.got")
        A(f"ds_write_b128 {vQR[0]}, {q(QF)}")
        for k in range(4): A(f"v_dot2_f32_bf16 v{C}, v{QF+k}, v{ONES}, {'v%d'%C if k else 0}")
        A(f"{MF} {q(Dr)}, {q(KF)}, {q(QF)}, 0")
        A(f"v_cmp_u_f32 vcc, v{C}, v{C}")
        A(f"{MF} {q(Dr+4)}, {q(KF+16)}, {q(QF)}, 0")
        mark(); retry(lbl+"_again")
        barrier(1,7)
        stamp("a1.bar0")
        def warm():
            lab(lbl+"_again"); loadQ(); spin(False); A(f"s_branch {lbl}_q{M[0]}")
        (COLD if M[0] else WARM).append((M[0],warm))
        return None
    def scale_ops():
        ST=T+16; a=T+18
        return [f"v_mul_f32 v{a}, 0x3e0293ee, v{a}",
                f"v_mul_f32 v{a+1}, v{ST+1}, v{a}",
                f"v_pk_mul_f32 {d(ST)}, v[{vCS0[1:]}:{vCS1[1:]}], {d(a)} op_sel:[0,1] op_sel_hi:[1,1]"]
    def att_scores(it,st):
        QF=T; ST=T+16; CS=T+20; Dr=T+36; t=T+44; U=T+48; a=T+18
        if it==0:
            for s in range(1,4): A(f"ds_read_b128 {q(CS+4*s)}, {vQR[s]} offset:4096")
        for s in range(1,4): A(f"ds_read_b128 {q(QF+4*s)}, {vQR[s]}")
        if it==0:
            A("s_waitcnt lgkmcnt(3)")
            for s in range(4):
                for tt in range(2): A(f"{MF} {q(Dr+4*tt)}, {q(KF+16*tt+4*s)}, {q(CS+4*s)}, {'0' if s==0 else q(Dr+4*tt)}")
            rs8(vCS0,vCS1,t,Dr)
            for tt in range(2): A(f"{MF} {q(Dr+4*tt)}, {q(KF+16*tt)}, {q(QF)}, 0")
        st=(st+scale_ops() if st is not None else [])+[""]*16
        for x in st[:3]: A(x)
        if it: fill("q0","")
        k=3
        for s in range(1,4):
            A(f"s_waitcnt lgkmcnt({3-s})")
            for tt in range(2):
                A(f"{MF} {q(Dr+4*tt)}, {q(KF+16*tt+4*s)}, {q(QF+4*s)}, {q(Dr+4*tt)}")
                for _ in range(1 if (tt or st[k].startswith("v_rsq")) else 2):
                    if k<len(st): A(st[k]); k+=1
        rs8(f"v{U}",f"v{U+1}",t,Dr)
        A(f"v_pk_fma_f32 {d(U)}, {d(U)}, {d(a)}, {d(ST)} op_sel_hi:[1,0,1] neg_lo:[0,0,1] neg_hi:[0,0,1]")
        m=T+50; tmp=T+51; lbl=f"L_sm{it}"
        stamp(f"a{it}.ok")
        A(f"v_exp_f32 v{t}, v{U}"); A(f"v_exp_f32 v{t+1}, v{U+1}")
        A(f"v_max_f32 v{m}, |v{U}|, |v{U+1}|")
        A(f"v_cvt_pk_bf16_f32 v{t}, v{t}, v{t+1}")
        A(f"ds_write2st64_b32 {vPW}, v{t}, {vZ} offset0:0 offset1:4")
        A(f"v_cmp_lt_f32 vcc, s10, v{m}"); retry(lbl+"_max")
        lab(lbl+"_done")
        def cold():
            lab(lbl+"_max")
            A(f"v_max_f32 v{m}, v{U}, v{U+1}")
            A(f"v_max_f32_dpp v{m}, v{m}, v{m} "+dpp("row_ror:4"))
            A(f"v_max_f32_dpp v{tmp}, v{m}, v{m} "+dpp("row_ror:8"))
            A(f"v_max_f32_dpp v{m}, v{m}, v{m} "+dpp("row_ror:8"))
            A(f"v_permlane16_swap_b32 v{m}, v{tmp}")
            A(f"v_max_f32 v{t}, v{m}, v{tmp}"); A(f"v_max_f32 v{m}, v{m}, v{tmp}")
            A(f"v_permlane32_swap_b32 v{m}, v{t}"); A(f"v_max_f32 v{m}, v{m}, v{t}")
            A(f"v_pk_add_f32 {d(U)}, {d(U)}, {d(m)} op_sel_hi:[1,0] neg_lo:[0,1] neg_hi:[0,1]")
            A(f"v_exp_f32 v{U}, v{U}"); A(f"v_exp_f32 v{U+1}, v{U+1}")
            A(f"v_cvt_pk_bf16_f32 v{U}, v{U}, v{U+1}")
            A(f"ds_write2st64_b32 {vPW}, v{U}, v{m} offset0:0 offset1:4")
            A(f"s_branch {lbl}_done{M[0]}")
        COLD.append((M[0],cold))
    def att_pv(it):
        B=T; BA=T+16; LA=T+20; ACC=T+24; m=T+32; al=T+34; Mx=T+36; Ls=T+37; t=T+40; U=T+44; lbl=f"L_pv{it}"
        stamp(f"a{it}.bar1")
        def mm(s,u): A(f"{MF} {q(ACC+4*u)}, {q(VF+8*s+4*u)}, {q(B+4*s)}, {q(ACC+4*u) if s else 0}")
        A(f"ds_read_b128 {q(B)}, {vPF0}"); A(f"ds_read_b32 v{m}, {vPR} offset:1024")
        for s in range(1,4): A(f"ds_read_b128 {q(B+4*s)}, {vPF1 if s&2 else vPF0} offset:{256*s}")
        A(f"ds_read_b128 {q(BA)}, {vPR}")
        A(f"v_mov_b32 v{Mx}, 0")
        if it and o.get("pvpad",0): padsite()
        A("s_waitcnt lgkmcnt(5)")
        mm(0,0); A("s_waitcnt lgkmcnt(3)"); A(f"v_cmp_neq_f32 vcc, 0, v{m}")
        mm(0,1); mm(1,0)
        if it and o.get("pvpad",0): mark()
        retry(lbl+"_mix")
        mm(1,1); A("s_waitcnt lgkmcnt(0)")
        la=lambda: A(f"{MF} {q(LA)}, {q(ONES)}, {q(BA)}, 0")
        l1=lambda: A(f"v_add_f32_dpp v{Ls}, v{LA}, v{LA} "+dpp("row_ror:4"))
        l2=lambda: A(f"v_add_f32_dpp v{Ls}, v{Ls}, v{Ls} "+dpp("row_ror:8"))
        cv=lambda k: A(f"v_cvt_pk_bf16_f32 v{U+k}, v{ACC+2*k}, v{ACC+2*k+1}")
        if o.get("lalast",0):
            mm(2,0); mm(3,0); mm(2,1); mm(3,1); la()
            for k in range(4): cv(k)
            fstore("buffer_store_dwordx4",q(U),vAP4,0); l1(); l2()
        else:
            mm(2,0); mm(3,0); la(); mm(2,1); mm(3,1)
            ps=o.get("pvst",2)
            if ps<2:
                l1(); cv(0); cv(1); l2()
                if ps: A("s_mov_b64 exec, s[12:13]")
                cv(2); cv(3)
                fstore("buffer_store_dwordx4",q(U),vAP4,0)
                if ps: A("s_mov_b64 exec, -1")
            else:
                cb=lambda k: A(f"v_cvt_pk_bf16_f32 v{U}, v{ACC+2*k}, v{ACC+2*k+1}")
                l1(); cb(0); A("s_nop 0"); l2()
                for k in range(1,4): A(f"s_mov_b64 exec, s[{12+2*k}:{13+2*k}]"); cb(k)
                A("s_mov_b64 exec, -1")
                fstore("buffer_store_dword",f"v{U}",vAP,0)
        lab(lbl+"_done")
        fstore("buffer_store_dwordx2",d(Mx),vLP,0,0x400*it)
        def cold():
            lab(lbl+"_mix")
            A("s_waitcnt lgkmcnt(0)"); A("s_nop 7")
            for s in range(4): A(f"ds_read_b128 {q(B+4*s)}, {vPB[s]}")
            A(f"{MF} {q(LA)}, {q(ONES)}, {q(BA)}, 0")
            A(f"v_max_f32_dpp v{Mx}, v{m}, v{m} "+dpp("row_ror:4"))
            A(f"v_max_f32_dpp v{Mx}, v{Mx}, v{Mx} "+dpp("row_ror:8"))
            A(f"v_sub_f32 v{al}, v{m}, v{Mx}"); A(f"v_exp_f32 v{al}, v{al}")
            A(f"v_mul_f32 v{Ls}, v{al}, v{LA}")
            A(f"v_add_f32_dpp v{Ls}, v{Ls}, v{Ls} "+dpp("row_ror:4"))
            A(f"v_add_f32_dpp v{Ls}, v{Ls}, v{Ls} "+dpp("row_ror:8"))
            A("s_waitcnt lgkmcnt(0)")
            for s in range(4): mm(s,0); mm(s,1)
            for r in range(0,8,2): A(f"v_pk_mul_f32 {d(ACC+r)}, {d(ACC+r)}, {d(al)} op_sel_hi:[1,0]")
            rs8(f"v{U}",f"v{U+1}",t,ACC)
            A(f"v_cvt_pk_bf16_f32 v{U}, v{U}, v{U+1}")
            fstore("buffer_store_dword",f"v{U}",vAP,0)
            A(f"s_branch {lbl}_done{M[0]}")
        COLD.append((M[0],cold))
    def wo_stage(it,lbl):
        X=T; LM=T+8; Dr=T+12; Mx=T+10; wv=T+11; ACC=T+28; U=T+32; Ls=T+35
        W4=T+36
        stamp(lbl+".ack"); lab(lbl); stamp(lbl+".try")
        A(f"buffer_load_dwordx2 {d(LM)}, {vLG}, {sF}, 0 offen offset:{0x400*it} sc1")
        A(f"buffer_load_dwordx4 {q(X)}, {vAG}, {sF}, 0 offen sc1")
        A(f"buffer_load_dwordx4 {q(X+4)}, {vAG}, {sF}, 0 offen offset:1024 sc1")
        spin()
        sm=lambda k,src=None: A(f"v_add_f32_dpp v{Ls}, v{src or Ls}, v{src or Ls} "+dpp(R16[k]))
        A("s_waitcnt vmcnt(2)")
        A(f"v_cmp_neq_f32 vcc, 0, v{LM}")
        sm(0,LM+1)
        we=o.get("wearly",0)
        A("s_waitcnt vmcnt(1)")
        A(f"{MF} {q(Dr)}, {q(SEL)}, {q(X)}, 0")
        if we: mark(); retry(lbl+"_chk")
        A("s_waitcnt vmcnt(0)"); stamp(lbl+".got")
        A(f"{MF} {q(Dr)}, {q(SEL)}, {q(X+4)}, {q(Dr)}")
        if not we: mark(); retry(lbl+"_chk")
        sm(1)
        sm(2)
        rs4(U,U+1,U+2,Dr)
        lab(lbl+"_sum")
        A(f"v_cvt_pk_bf16_f32 v{U+1}, v{U}, v{U}")
        A(f"ds_write_b16 {vXW}, v{U+1} offset:{L_OB}")
        A(f"v_cmp_u_f32 vcc, v{U}, v{Ls}")
        A(f"v_add_f32_dpp v{U}, v{Ls}, v{Ls} "+dpp(R16[3]))
        def warm():
            lab(lbl+"_chk")
            A(f"v_cmp_u_f32 vcc, v{LM}, v{LM+1}"); retry(lbl); A(f"s_branch {lbl}_mix{M[0]}")
        def cold():
            lab(lbl+"_mix")
            A("s_waitcnt vmcnt(0)"); A("s_nop 7")
            for k in range(4): A(f"{MF} {q(Dr+4*k)}, {q(SELU+4*(k&1))}, {q(X+4*(k>>1))}, 0")
            for k in range(4): A(f"v_max_f32_dpp v{Mx}, v{Mx if k else LM}, v{Mx if k else LM} "+dpp(R16[k]))
            A(f"v_mov_b32 v{wv}, v{Mx}"); A(f"v_permlane32_swap_b32 v{Mx}, v{wv}"); A(f"v_max_f32 v{Mx}, v{Mx}, v{wv}")
            A(f"v_sub_f32 v{wv}, v{LM}, v{Mx}"); A(f"v_exp_f32 v{wv}, v{wv}")
            A(f"v_mul_f32 v{Ls}, v{wv}, v{LM+1}")
            for k in range(4):
                for r in range(4):
                    A(f"{'v_mul_f32_dpp' if k==0 else 'v_fmac_f32_dpp'} v{ACC+r}, v{wv}, v{Dr+4*k+r} "+dpp(f"quad_perm:[{k},{k},{k},{k}]"))
            for k in range(3): sm(k)
            rs4(U,U+1,U+2,ACC)
            A(f"v_mov_b32 v{U+1}, v{U}")
            A(f"v_permlane32_swap_b32 v{U}, v{U+1}"); A(f"v_add_f32 v{U}, v{U}, v{U+1}")
            A(f"s_branch {lbl}_sum{M[0]}")
        (COLD if M[0] else WARM).append((M[0],warm)); COLD.append((M[0],cold))
        retry(lbl)
        stamp(lbl+".ok")
        A(f"v_mov_b32 v{Ls}, v{U}")
        A("s_waitcnt lgkmcnt(0)"); A("s_barrier")
        stamp(lbl+".bar")
        if it==0: A(f"ds_read_b32 v15, {vZ} offset:{L_SYNC+16}")
        g=gemv(WO,"O",it,f"v{Ls}"); next(g)
        A(f"v_permlane32_swap_b32 v{Ls}, v{U}"); A(f"v_add_f32 v{Ls}, v{Ls}, v{U}"); A(f"v_rcp_f32 v{Ls}, v{Ls}")
        next(g)
        next(g)
        spublish(T+4,2*it)
        if it==0:
            A(f"v_readfirstlane_b32 {sN}, v15")
    def down_stage(it,lbl):
        G=T+4; Uq=T+5; E=T+6; ST=T+8; rs=T+10; X=T+12; Dr=T+16
        P=T+36; SI=T+40; CS=T+44
        Bq=T+2; nP=2 if it==0 else 1
        def loadP():
            A(f"buffer_load_dwordx4 {q(P)}, {vUG}, {sF}, {sA if it else 0} offen sc1")
            if it==0: A(f"buffer_load_dwordx4 {q(CS)}, {vUG}, {sF}, {sT0} offen sc1")
        dot=lambda dst,src,acc: A(f"v_dot2_f32_bf16 {dst}, v{src}, v{ONES}, {acc}")
        stamp(lbl+".ack"); lab(lbl)
        A(f"buffer_load_dwordx2 {d(SI)}, {vST}, {sF}, 0 offen offset:{0x100*it+0x80} sc1")
        spin(); wait(o.get("dgap",1)); loadP()
        st=stats_ops(ST,SI,rs)
        A(f"s_waitcnt vmcnt({nP})")
        A(st[0]); A(st[1]); A(f"v_cmp_u_f32 vcc, v{SI}, v{SI+1}")
        A(st[2]); A(st[3]); loadP()
        A(st[4]); A(st[5]); retry(lbl)
        for x in st[6:]: A(x)
        if it: A(f"v_pk_mul_f32 {d(Bq)}, {d(ST)}, v[{vCSG[1:]}:{vCSU[1:]}] op_sel:[1,0] neg_lo:[1,0] neg_hi:[1,0]")
        A(f"v_mul_f32 v{rs+1}, 0xbfb8aa3b, v{rs}")
        lab(lbl+"_p")
        A(f"s_waitcnt vmcnt({nP})"); stamp(lbl+".got")
        if it==0:
            dot(vCSG,CS,0); dot(vCSU,CS+2,0); dot(vCSG,CS+1,vCSG); dot(vCSU,CS+3,vCSU)
            A(f"v_pk_mul_f32 {d(Bq)}, {d(ST)}, v[{vCSG[1:]}:{vCSU[1:]}] op_sel:[1,0] neg_lo:[1,0] neg_hi:[1,0]")
        dot(f"v{G}",P,f"v{Bq}"); dot(f"v{G}",P+1,f"v{G}"); dot(f"v{Uq}",P+2,f"v{Bq+1}"); dot(f"v{Uq}",P+3,f"v{Uq}")
        A(f"v_mul_f32 v{E}, v{G}, v{rs+1}")
        A(f"v_exp_f32 v{E}, v{E}")
        A(f"v_cmp_u_f32 vcc, v{G}, v{Uq}")
        def warm():
            lab(lbl+"_again"); loadP(); spin(False); A(f"s_branch {lbl}_p{M[0]}")
        (COLD if M[0] else WARM).append((M[0],warm))
        A(f"v_add_f32 v{E}, 1.0, v{E}")
        A(f"v_rcp_f32 v{E}, v{E}")
        A(f"v_pk_mul_f32 {d(G)}, {d(G)}, {d(rs)} op_sel_hi:[1,0]")
        A(f"v_mul_f32 v{G}, v{G}, v{E}")
        if o.get("dbr",1): mark(); retry(lbl+"_again")
        A(f"v_mul_f32 v{G}, v{G}, v{Uq}")
        A(f"v_cvt_pk_bf16_f32 v{E}, v{G}, v{G}")
        A(f"ds_write_b16 {vHW}, v{E} offset:{L_HB}")
        if not o.get("dbr",1): retry(lbl+"_again")
        stamp(lbl+".ok")
        A("s_waitcnt lgkmcnt(0)"); lab(lbl+"_b")
        A("s_barrier")
        A(f"ds_read_b128 {q(X)}, {vHR} offset:{L_HB}")
        if "D" in CH:
            A(f"ds_read_b128 {q(Dr+4)}, {vHR} offset:{L_HB+64}")
            A("s_waitcnt lgkmcnt(1)"); A(f"{MF} {q(Dr)}, {q(X)}, {q(W2)}, 0")
            A("s_waitcnt lgkmcnt(0)"); A(f"{MF} {q(Dr)}, {q(Dr+4)}, {q(W2+4)}, {q(Dr)}")
        else:
            A("s_waitcnt lgkmcnt(0)")
            A(f"{MF} {q(Dr)}, {q(X)}, {q(W2)}, 0"); A(f"{MF} {q(Dr+4)}, {q(X)}, {q(W2+4)}, 0")
            A(f"v_add_f32 v{Dr}, v{Dr}, v{Dr+5}")
        spublish(Dr,2*it+1)

    def bumpE():
        A(f"s_or_b32 s48, s2, {sw}"); A(f"s_cselect_b32 s48, {OOB:#x}, 0"); A(f"s_add_u32 s48, s48, {WS_E:#x}"); A(f"v_mov_b32 v15, {stag}")
        A(f"buffer_store_dword v15, {vZ}, {sW}, s48 offen sc1")
    def clr23():
        for r_ in ("s50","s51"): A(f"buffer_store_dword {vNAN}, v12, {sW}, {r_} offen sc1")
    def w2frags():
        A(f"v_and_b32 v15, 0xfff, {vWR}")
        for t in range(2):
            for hh in range(2): A(f"ds_read_b64_tr_b16 {d(W2+4*t+2*hh)}, v15 offset:{L_W2+4096*t+2048*hh}")
    def chain():
        rid[0]=0
        A("s_mov_b32 s45, 0x3727c5ac")
        run(gemv(WQ,"Q",0,xs=xstat()))
        stamp("Qpub0")
        if not M[0] and not o.get("exp_nohs"):
            lds_wait(1,1,mask=True)
            A("v_readfirstlane_b32 s44, v15"); A("s_lshr_b32 s44, s44, 16"); A("s_cbranch_scc0 L_slow")
        stamp("B1")
        A(f"v_cmp_gt_u32 vcc, 16, v0"); A(f"v_subrev_u32 {vQP}, {F_Q0-F_Q1:#x}, {vQP}"); A(f"v_cndmask_b32 {vQP}, v13, {vQP}, vcc")
        if o["qwait"]=="ack": A("s_waitcnt vmcnt(0)")
        else: lds_wait(0,o["qwait"])
        def kfrags():
            stamp("qiss")
            lds_wait(0,12)
            stamp("K")
            for s in range(4):
                if s: A(f"v_xor_b32 v15, {64*s}, v7")
                for t in range(2): A(f"ds_read_b128 {q(KF+16*t+4*s)}, v{15 if s else 7} offset:{4096*t}")
        st=att_gather(0,kfrags)
        stamp("qgot0")
        att_scores(0,st)
        barrier(0,2)
        stamp("qg0")
        A(f"s_mov_b32 {sB}, {F_Q1:#x}"); A(f"s_mov_b32 {sT0}, 0x1000")
        hop()
        lds_wait(0,20)
        stamp("V")
        for e in range(8):
            for hh in range(2): A(f"ds_read_b64_tr_b16 {d(VF+4*e+2*hh)}, v8 offset:{8192*(e>>1)+4096*hh+8*(e&1)}")
        att_pv(0)
        stamp("Apub0")
        hop()
        lds_wait(0,24)
        wfrags(WO,L_WO)
        ww=o.get("wwait",28)
        if ww=="ack": A("s_waitcnt vmcnt(0)")
        elif ww>24: lds_wait(0,ww)
        stamp("all")
        for it in range(2):
            wo_stage(it,f"L_wo{it}")
            stamp(f"WOpub{it}")
            if it==0:
                A(f"s_lshr_b32 {sG0}, {sg}, 1"); A(f"s_lshl_b32 {sG0}, {sG0}, 15"); A(f"s_add_u32 {sG0}, {sG0}, {sN}")
                for k,r_ in enumerate((sG1,sG2,sG3)): A(f"s_xor_b32 {r_}, {sG0}, {0x8000*(k+1):#x}")
                A(f"v_readfirstlane_b32 s48, {vSP}"); A("s_andn2_b32 s48, s48, 0x2820"); A(f"s_mul_i32 s49, {sw}, {sw}"); A("s_lshl_b32 s49, s49, 16"); A("s_add_u32 s48, s48, s49"); A(f"s_add_u32 s48, s48, {WS_S1+0x40000:#x}")
                A(f"s_cmp_eq_u32 {sw}, 3"); A(f"s_cselect_b32 s48, {OOB:#x}, s48")
                A("v_and_b32 v14, 15, v0"); A("v_lshlrev_b32 v14, 2, v14"); A("v_and_b32 v15, 1, v1"); A("v_lshl_add_u32 v14, v15, 11, v14"); A("v_lshrrev_b32 v15, 5, v0"); A("v_lshl_add_u32 v14, v15, 13, v14")
                A(f"buffer_store_dword {vNAN}, v14, {sW}, s48 offen sc1")
                wfrags(WU,L_WU)
                if o.get("w2early",1): w2frags()
                if o.get("split0",0):
                    wait(o.get("s0a",0))
                    for t in range(3): s0load(t)
            if it==1 and o.get("bumpat",1)==2: bumpE()
            sack(2*it,(1+3*o.get("split0",0)) if it==0 else 0)
            run(gemv(WU,"U",it,xs=sg_head(f"L_su{it}",2*it)))
            A(f"s_mov_b32 {sR}, {WS_S1+0x40000*2*it:#x}")
            if it==0 and o.get("lateclr",1)==3: clr23()
            stamp(f"Upub{it}")
            if it==0:
                A(f"v_cmp_gt_u32 vcc, 16, v0")
                A(f"v_add_u32 {vUP}, 0x2000, {vUP}"); A(f"v_cndmask_b32 {vUP}, v13, {vUP}, vcc")
                A(f"ds_read_u16_d16_hi {vCAR}, {vXW} offset:{L_XU}")
                if not o.get("w2early",1):
                    w2frags(); A("s_waitcnt lgkmcnt(0)")
            else:
                A("v_and_b32 v14, 16, v0"); A("v_cmp_eq_u32 vcc, 0, v14"); A(f"v_cndmask_b32 {vSP}, v13, {vSP}, vcc")
            A(f"s_cmp_eq_u32 {sw}, {o.get('dw',3)}"); A(f"s_cbranch_scc0 L_dn{it}_b{M[0]}")
            fwait(f"D{it}")
            down_stage(it,f"L_dn{it}")
            if it and o.get("wb") and not M[0]: A(f"buffer_store_dword {vNAN}, {vAP}, {sF}, 0 offen sc1")
            stamp(f"Dpub{it}")
            if it==0:
                fstore("buffer_store_dword",vNAN,vAP,0)
                if o.get("bumpat",1)==1: bumpE()
                sack(1,2 if o.get("bumpat",1)==1 else 1)
                run(gemv(WQ,"Q",1,xs=sg_head("L_sq1",1)))
                A(f"s_mov_b32 {sR}, {WS_S1+0x40000:#x}")
                stamp("Q.pub1")
                if o.get("aearly",1): att_scores(1,att_gather1())
                else: fwait("A"); stamp("a1.ack"); att_scores(1,att_gather(1))
                fill("p0",""); A("s_waitcnt lgkmcnt(0)"); fill("p1",""); A("s_barrier"); fill("p2","")
                att_pv(1)
                stamp("A.pub1")
                fwait("W")
    chain()
    A("L_last:")
    A(f"s_xor_b32 s48, {snb}, {sw}"); A(f"s_or_b32 s48, s48, {sg}"); A("s_cbranch_scc1 L_fin")
    sack(3)
    sg_head("L_sf",3)
    A("L_fin:")
    if o.get("pad"):
        stamp("end") if not stamps else None
        A("s_waitcnt lgkmcnt(0)")
        if o["pad"][1]=="none": A("s_mov_b32 s72, s70")
        if len(o["pad"])>2: A("s_sub_u32 s72, s72, s70"); A(f"s_mul_i32 s72, s72, {o['pad'][2]}"); A("s_add_u32 s72, s72, s70")
        if len(o["pad"])>3: A(f"s_cmp_eq_u32 s2, {o['pad'][3]}"); A("s_cbranch_scc0 L_exit")
        A(f"s_add_u32 s72, s72, {o['pad'][0]}")
        A("L_pad:"); A("s_memrealtime s[74:75]"); A("s_waitcnt lgkmcnt(0)"); A("s_sub_u32 s76, s74, s72"); A("s_cmp_lt_i32 s76, 0"); A("s_cbranch_scc1 L_pad")
    if stamps: stamp("end"); dump(sw)
    A("s_endpgm")
    if o.get("hopend"): hop()
    emit(WARM)
    A("L_hotend:")
    A("L_giveup:")
    A("s_waitcnt vmcnt(0)")
    if stamps: A("s_or_b32 s3, s3, 0x100")
    bumpE()
    for wd in (2,7): A(f"ds_add_u32 {vZ}, {vONE} offset:{L_SYNC+4*wd}")
    A(f"s_xor_b32 s48, {snb}, {sw}"); A(f"s_or_b32 s48, s48, {sg}"); A("s_cbranch_scc1 L_fin")
    A(f"buffer_store_short {vNAN}, {vOUT}, {sL}, 0 offen"); A("s_branch L_fin")
    A("L_hvec:")
    A("v_and_b32 v13, 31, v0"); A("v_lshlrev_b32 v14, 2, v13"); A("v_lshlrev_b32 v15, 7, v13")
    A("v_mov_b32 v16, s42"); A("s_mov_b64 exec, 1")
    A(f"buffer_store_dword v16, {vZ}, {sW}, {sR} offen sc1")
    A("s_mov_b64 exec, -1")
    A("L_hvec1:")
    A(f"buffer_load_dword v17, v14, {sW}, {sA} offen sc1")
    A(f"buffer_load_dword v18, v15, {sW}, {sN} offen sc1")
    A("v_mov_b32 v13, 1")
    A(f"s_sub_u32 {sspin}, {sspin}, 1"); A("s_cbranch_scc1 L_hsig")
    A("s_waitcnt vmcnt(0)")
    A("v_and_b32 v17, 0xffffffe7, v17"); A("v_mov_b32 v13, 0x10001")
    A("v_cmp_ne_u32 vcc, s42, v17"); A("s_cbranch_vccz L_hsig")
    A(f"v_xor_b32 v19, {stag}, v18"); A("v_cmp_lt_u32 vcc, 7, v19"); A("s_cbranch_vccnz L_hvec1")
    A("v_cmp_ne_u32 vcc, s42, v18"); A("s_cbranch_vccz L_hvec1")
    A(f"s_add_u32 {sB}, {sB}, {WS_SLOW:#x}"); A(f"s_add_u32 {sT1}, {sT1}, {WS_SLOW:#x}")
    A("s_mov_b64 exec, s[50:51]"); A(f"buffer_store_dwordx4 v[8:11], v3, {sW}, {sT1} offen sc1"); A("s_mov_b64 exec, -1")
    for k in range(2): A(f"buffer_store_dwordx4 v[8:11], {vL16}, {sW}, {sB} offen offset:{1024*k} sc1")
    A(f"v_mov_b32 v16, {stag}"); A("v_mov_b32 v13, 1")
    A("s_waitcnt vmcnt(0)")
    A("s_mov_b64 exec, 1")
    A(f"buffer_store_dword v16, {vZ}, {sW}, {sR} offen offset:4 sc1")
    A("s_mov_b64 exec, -1")
    A("L_hvec2:")
    A(f"buffer_load_dword v18, v15, {sW}, {sN} offen offset:4 sc1")
    A(f"s_sub_u32 {sspin}, {sspin}, 1"); A("s_cbranch_scc1 L_hsig")
    A("s_waitcnt vmcnt(0)")
    A(f"v_cmp_ne_u32 vcc, {stag}, v18"); A("s_cbranch_vccnz L_hvec2")
    A("L_hsig:")
    A("s_mov_b64 exec, 1"); A(f"ds_add_u32 {vZ}, v13 offset:{L_SYNC+4}")
    hstamp(2)
    A("s_branch L_hok")
    if stamps:
        A("L_hdump:"); A("s_mov_b64 exec, -1"); dump("4"); A("s_endpgm")
        A("L_ldump:"); ws_srd(); dump("5"); A("s_endpgm")
    A("L_slow:")
    A(f"s_add_u32 s40, s40, {WS_SLOW:#x}"); A("s_addc_u32 s41, s41, 0")
    M[0]="s"; chain(); A("s_branch L_last"); emit(COLD)
    txt=HEADER+f"; @launch grid=(256,1,1) block=(512,1,1) lds={LDS_BYTES}\n"
    txt+=f""".amdgcn_target "amdgcn-amd-amdhsa--gfx950"
.text
.globl {NAME}_kernel
.p2align 12
.fill 832, 4, 0xbf810000
.p2align 8
.type {NAME}_kernel,@function
{NAME}_kernel:
"""+A.text()+f""".section .rodata,"a"
.p2align 6
.amdhsa_kernel {NAME}_kernel
  .amdhsa_next_free_vgpr 256
  .amdhsa_next_free_sgpr 102
  .amdhsa_accum_offset 256
  .amdhsa_group_segment_fixed_size 0
  .amdhsa_kernarg_size 96
  .amdhsa_user_sgpr_count 2
  .amdhsa_user_sgpr_kernarg_segment_ptr 1
  .amdhsa_system_sgpr_workgroup_id_x 1
  .amdhsa_float_denorm_mode_32 3
.end_amdhsa_kernel
"""
    return txt, names
def labels(txt):
    import subprocess,re
    open("_h.s","w").write(txt.replace(".fill 832, 4",".fill 1024, 4"))
    subprocess.run(["clang","-x","assembler","-target","amdgcn-amd-amdhsa","-mcpu=gfx950","-c","_h.s","-o","_h.o"],check=True)
    out=subprocess.run(["llvm-readelf","-s","-W","_h.o"],capture_output=True,text=True).stdout
    L={m.group(2):int(m.group(1),16) for m in re.finditer(r"^\s*\d+: ([0-9a-f]+) .* (\S+)$",out,re.M)}
    return {k:v-L[NAME+"_kernel"] for k,v in L.items()}
def gen(stamps=False, opts=None):
    o=dict(opts or {})
    if o.get("warm",1)==0: o["_hops"]=None; return gen1(stamps,o)
    L=labels(gen1(stamps,o)[0])
    c=sorted((v,int(k[2:])) for k,v in L.items() if k.startswith("HC")); end=L["L_hotend"]
    pick=[]; last=None
    for i,(a,k) in enumerate(c):
        nxt=(c[i+1][0] if i+1<len(c) else end)
        if last is None or nxt-last>o.get("hopgap",640): pick.append(k); last=a
    page=[]
    for _ in range(4):
        pk=sorted(set(pick)|set(page)); h=(len(pk)+1)//2
        o["_hops"]=[pk[:h][::-1],pk[h:][::-1]]; o["_page"]=page; o["_pads"]={}
        if o.get("bral",1):
            for k in sorted(int(x[2:]) for x in L if x.startswith("BR")):
                o["_pads"][k]=((o.get("brk",{}).get(k,o.get("brat",4))-labels(gen1(stamps,o)[0])[f"BR{k}"])%o.get("brmod",64))//4
        if not o.get("pageal",1): break
        L2=labels(gen1(stamps,o)[0]); c2=sorted((v,int(k[2:])) for k,v in L2.items() if k.startswith("HC"))
        miss=[k for i,(a,k) in enumerate(c2) if k not in page and a//4096!=((c2[i+1][0] if i+1<len(c2) else L2["L_hotend"])-4)//4096]
        if not miss: break
        page=page+miss[:1]
    return gen1(stamps,o)
if __name__=="__main__":
    txt,names=gen(stamps=False)
    open(sys.argv[1] if len(sys.argv)>1 else "cdna_kernels/"+NAME+".s","w").write(txt)
```

```python
import sys
from emit import Asm
NAME="interleave_layers__sliding_block_cached__glu_gated_swiglu__decode"
HEADER=open("cdna_kernels/"+NAME+".s.ref").read().split("; Override launch")[0]

WS_PR=0x60000; WS_FL=0x50000; WS_E=0x40000; WS_PF=0x48000; WS_F=0x200000; FSZ=0x20000; WS_SLOW=0x100000; WS_DBG=0x400000; WS_S1=0x80000
F_ATT=0; F_Q1=0x8000; F_U=0x9000; F_LAM=0xC000; F_ST=0xC800; F_Q0=0x10000; F_ST0=0x12000
OOB=0x3ff00000; TAGK=0x9E376001; NREP=16
L_WQ=0; L_WO=0x4000; L_WU=0x8000; L_W2=0xC000; L_XB=0xE000; L_ONES=0xE100; L_OB=0xE200; L_SYNC=0xE380; L_PB=0xE800; L_ZERO=0xE300; L_HB=0xE400; L_XU=0xE600
L_K=0x10000; L_V=0x18000; L_OBUF=0; L_QB=0x20000; LDS_BYTES=0x22000
pX,pK,pV,pQ,pO,_,p1,p3,p2,pOUT,_,pWS=[f"s[{i}:{i+1}]" for i in range(4,28,2)]
sL,sP,sW,sF="s[28:31]","s[32:35]","s[36:39]","s[40:43]"
sg,sc,skq,snb,sw,stag,sdbg,sspin,sT0,sT1,sN,sR,sA,sB,sC,sD="s52 s53 s54 s55 s56 s57 s58 s59 s60 s61 s62 s63 s64 s65 s66 s67".split()
sHI="s[68:69]"; STAMP0=70
sTG,sTF,sG1,sG2,sG3,sG0="s4","s5","s6","s7","s8","s9"
def q(b): return f"v[{b}:{b+3}]"
def d(b): return f"v[{b}:{b+1}]"
WQ,WO,WU,W2,KF,VF=16,32,48,64,72,104
SEL,SELU,MASK,ONES,PB=136,140,148,156,160
vPB=[f"v{160+k}" for k in range(4)]; vQR=[f"v{164+k}" for k in range(4)]; vPF0,vPF1,vAP4="v168","v169","v170"; vXK=["v171","v172","v173"]; vOK=["v148","v149","v150"]
SELT=152
(vSG,vSP,vQP,vL16,vST,vSTP,vAP,vLP,vAG,vLG,vUP,vUG,vXW,vXR,vOR,vPW,vPR,vHW,vHR,vCAR,vCS0,vCS1,vCSG,vCSU,vOUT,vWR,vNAN,vQG)=[f"v{i}" for i in range(176,204)]
vZ,vONE,vXS,vSG0,vSP0="v5","v6","v4","v10","v11"
T=204
SPIN=1<<16
MF="v_mfma_f32_16x16x32_bf16"

def gen1(stamps=False, opts=None):
    o=dict(nt="nt",ptnt="nt",D=24,qwait="ack",fwait="ack",fwaitD=2,swait3=9,swait="far",copies=4,early=1,mask=0)
    o.update(opts or {})
    NREP=o.get('nrep',8)
    A=Asm(); A.timed=o.get("timed",1); nt=o["nt"]; D=o["D"]
    names=[]; M=[""]
    def stamp(name):
        if o.get("pad") and name==o["pad"][1]: A("s_memrealtime s[72:73]")
        if not stamps: return
        if o.get("only") is not None:
            if name not in o["only"]: return
        elif name in ("WOpub1","Upub1","setup") or "." in name: return
        if name not in names: names.append(name)
        k=STAMP0+2*names.index(name); assert k+1<=101
        A(f"{'s_memtime' if o.get('cyc') else 's_memrealtime'} s[{k}:{k+1}]")
    def hstamp(k):
        if stamps: A(f"s_memrealtime s[{STAMP0+2*k}:{STAMP0+2*k+1}]")
    def dpp(ctrl,bank=0xf): return f"{ctrl} row_mask:0xf bank_mask:{bank:#x}"
    def fstore(op,data,addr,soff,off=0):
        A(f"{op} {data}, {addr}, {sF}, {soff} offen offset:{off}{' sc1' if M[0] else ''}")
    rid=[0]
    def spin(site=True):
        rid[0]+=1
        if stamps:
            A(f"s_mov_b32 s3, {rid[0]}")
            if rid[0]<=10: A(f"s_add_u32 {sdbg}, {sdbg}, {1<<(3*(rid[0]-1))}")
        A(f"s_sub_u32 {sspin}, {sspin}, 1"); A("s_cbranch_scc1 L_giveup")
        if site: hop(); padsite()
    pid=[0]
    def padsite():
        if not M[0]:
            pid[0]+=1
            n_=o.get("_pads",{}).get(pid[0],0)
            if n_>2: A(f"s_branch PD{pid[0]}"); A.raw(f".fill {n_-1}, 4, 0xbf800000"); A(f"PD{pid[0]}:")
            else:
                for _ in range(n_): A("s_nop 0")
    def mark():
        if not M[0]: A(f"BR{pid[0]}:")
    hops=o.get("_hops"); hid=[0]
    def hop():
        if M[0]: return
        hid[0]+=1; k=hid[0]
        A(f"HC{k}:")
        if "_hops" not in o: return
        if k in o.get("_page",()): A(f"s_branch H{k}"); A.raw(".p2align 12")
        for ch in hops or []:
            if k in ch:
                i=ch.index(k); A(f"H{k}:"); A(f"s_cbranch_execz {'H%d'%ch[i+1] if i+1<len(ch) else 'L_exit'}")
    def lab(l): A(f"{l}{M[0]}:")
    def retry(l): A(f"s_cbranch_vccnz {l}{M[0]}")
    def head(l):
        lab(l)
        if o["mask"]: A("s_mov_b64 vcc, -1"); lab(l+"_m")
    def mon():
        if o["mask"]: A("s_mov_b64 exec, vcc")
    def moff():
        if o["mask"]: A("s_mov_b64 exec, -1")
    def mretry(l): retry(l+"_m" if o["mask"] else l)
    def rs4(dst,t0,t1,Dr):
        A(f"v_add_f32_dpp v{t0}, v{Dr}, v{Dr} "+dpp("row_ror:8",0x3))
        A(f"v_add_f32_dpp v{t1}, v{Dr+1}, v{Dr+1} "+dpp("row_ror:8",0x3))
        A(f"v_add_f32_dpp v{t0}, v{Dr+2}, v{Dr+2} "+dpp("row_ror:8",0xc))
        A(f"v_add_f32_dpp v{t1}, v{Dr+3}, v{Dr+3} "+dpp("row_ror:8",0xc))
        A(f"v_add_f32_dpp v{dst}, v{t0}, v{t0} "+dpp("row_shl:4",0x5))
        A(f"v_add_f32_dpp v{dst}, v{t1}, v{t1} "+dpp("row_shr:4",0xa))
    R16=["quad_perm:[1,0,3,2]","quad_perm:[2,3,0,1]","row_ror:4","row_ror:8"]
    def ws_srd():
        A("s_add_u32 s36, s26, 0x1fffff"); A("s_addc_u32 s37, s27, 0"); A("s_and_b32 s36, s36, 0xffe00000")
    wid=[0]
    def lds_wait(word,n,mask=False):
        wid[0]+=1
        A(f"L_w{wid[0]}:")
        if word==0 and o.get("psleep"): A(f"s_sleep {o['psleep']}")
        A(f"ds_read_b32 v15, {vZ} offset:{L_SYNC+4*word}"); A("s_waitcnt lgkmcnt(0)")
        if mask: A("v_and_b32 v14, 0xffff, v15")
        A(f"v_cmp_gt_i32 vcc, {n}, v{14 if mask else 15}"); A(f"s_cbranch_vccnz L_w{wid[0]}")
    def fill(key,dflt):
        for ch in o.get("f_"+key,dflt) if o.get("fill",0) else "":
            A("v_mov_b32 v14, v14" if ch=="v" else f"s_nop {ch}")
    def lds_arrive(word):
        A("s_mov_b64 exec, 1"); A(f"ds_add_u32 {vZ}, {vONE} offset:{L_SYNC+4*word}"); A("s_mov_b64 exec, -1")
    def barrier(it,word):
        if it==0: lds_arrive(word); lds_wait(word,4)
        else: A("s_waitcnt lgkmcnt(0)"); A("s_barrier")
    def dump(slot):
        A("s_waitcnt vmcnt(0) lgkmcnt(0)")
        A(f"s_lshl_b32 s48, s2, 3"); A(f"s_add_u32 s48, s48, {slot}"); A("s_lshl_b32 s48, s48, 8"); A(f"s_add_u32 s48, s48, {WS_DBG:#x}")
        A("v_mov_b32 v14, s48")
        for k,r in enumerate([f"s{STAMP0+2*k}" for k in range(16)]+[sspin,"s44",sN,"s3",sdbg]):
            A(f"v_mov_b32 v15, {r}"); A(f"buffer_store_dword v15, v14, {sW}, 0 offen offset:{4*k}")
        if o.get("cal") and slot==sw:
            A("s_mov_b32 s12, 0")
            A("L_cal0:"); A("s_memrealtime s[4:5]"); A("s_waitcnt lgkmcnt(0)")
            A("L_cal1:"); A("s_memrealtime s[6:7]"); A("s_memtime s[8:9]"); A("s_waitcnt lgkmcnt(0)"); A("s_cmp_eq_u32 s6, s4"); A("s_cbranch_scc1 L_cal1")
            A("v_mov_b32 v16, s6"); A("v_mov_b32 v17, s8"); A(f"buffer_store_dwordx2 v[16:17], v14, {sW}, s12 offen offset:96")
            A("s_sleep 9"); A("s_add_u32 s12, s12, 8"); A("s_cmp_lt_u32 s12, 160"); A("s_cbranch_scc1 L_cal0")

    stamp("start")
    if o.get("pad"): A("s_memrealtime s[70:71]")
    A(f"v_readfirstlane_b32 {sw}, v0"); A(f"v_mov_b32 {vZ}, 0")
    A(f"s_cmpk_eq_u32 {sw}, 320"); A("s_cbranch_scc1 L_init")
    A("L_args:")
    A("s_load_dwordx16 s[4:19], s[0:1], 0"); A("s_load_dwordx8 s[20:27], s[0:1], 64")
    A("s_cmpk_ge_u32 s2, 256"); A("s_cbranch_scc1 L_exit")
    if stamps: A("s_mov_b32 s3, 0"); A(f"s_mov_b32 {sdbg}, 0")
    A(f"s_lshr_b32 {sw}, {sw}, 6"); A("v_and_b32 v0, 63, v0")
    A(f"s_and_b32 {sg}, s2, 7"); A(f"s_lshr_b32 {sc}, s2, 3")
    A(f"s_and_b32 {skq}, {sc}, 3"); A(f"s_lshr_b32 {snb}, {sc}, 2")
    A("s_mov_b32 s31, 0x20000"); A("s_lshl_b32 s38, 5, 20"); A("s_mov_b32 s39, s31"); A("s_mov_b32 s35, s31")
    A(f"v_lshlrev_b32 {vL16}, 4, v0"); A("v_lshrrev_b32 v1, 4, v0")
    A(f"s_cmp_ge_u32 {sw}, 1"); A("s_cbranch_scc1 L_roles")
    A("v_lshlrev_b32 v8, 1, v1"); A("v_and_b32 v6, 7, v0"); A("v_xor_b32 v6, v6, v8"); A("v_lshlrev_b32 v6, 4, v6")
    A("v_lshrrev_b32 v7, 3, v0"); A("v_lshl_add_u32 v9, v7, 13, v6")
    A(f"v_mov_b32 v3, {5-(D+3)//4}")
    for u in range(1,4): A(f"v_add_u32 v{11+u}, {u*(65536-1024):#x}, v9")
    A("v_bfe_u32 v2, v0, 1, 1"); A("v_lshl_add_u32 v2, v1, 1, v2"); A("v_bfe_u32 v10, v0, 2, 2"); A("v_lshl_add_u32 v2, v2, 2, v10"); A("v_and_b32 v10, 1, v0"); A("v_lshl_add_u32 v2, v2, 1, v10"); A("v_lshlrev_b32 v2, 2, v2")
    A(f"s_lshl_b32 {sT1}, {skq}, 8"); A("s_movk_i32 s34, 1024"); A(f"s_lshl_b32 m0, {L_XB>>12}, 12")
    A(f"s_xor_b32 {sB}, {snb}, 1"); A(f"s_lshl3_add_u32 {sB}, {sg}, {sB}"); A(f"s_lshl_b32 {sB}, {sB}, 7")
    if o.get("qrot",1): A(f"s_lshr_b32 s46, {snb}, 1"); A(f"s_add_u32 s46, s46, {skq}"); A("s_and_b32 s46, s46, 3")
    else: A("s_mov_b32 s46, 0")
    A(f"s_lshl2_add_u32 s47, {skq}, s46"); A("s_lshl_b32 s47, s47, 18"); A(f"s_add_u32 {sB}, {sB}, s47"); A("s_lshl_b32 s46, s46, 12")
    A("v_and_b32 v4, 15, v0"); A("v_xor_b32 v4, v4, v8"); A("v_lshlrev_b32 v4, 4, v4"); A("v_lshl_add_u32 v4, v1, 8, v4"); A("v_xor_b32 v11, 0x80, v4")
    IL=o.get("il",(3,4))
    A(f"s_lshl4_add_u32 {sA}, {sg}, 15"); A(f"s_lshl_b32 {sA}, {sA}, 20"); A(f"s_mul_i32 {sD}, {sg}, {IL[1]}")
    n=[0]
    def mid(u):
        h=o.get("half",0)
        if (h==2 and u==2) or (h==1 and u): A(f"s_waitcnt vmcnt({D-4})")
    def step():
        A("v_add_u32 v3, 1, v3"); A(f"s_waitcnt vmcnt({D-4})"); A(f"ds_write_b32 {vZ}, v3 offset:{L_SYNC}")
    def kv(srd,lds,first,cnt):
        n[0]+=1; lbl=f"L_ld{n[0]}"
        A(f"s_add_u32 {sN}, {sD}, {first}"); A(f"s_add_u32 {sR}, {sD}, {first+cnt}")
        A(f"{lbl}:")
        A(f"s_and_b32 s44, {sN}, 7"); A("s_lshl_b32 s45, s44, 12"); A(f"s_add_u32 m0, s45, {lds:#x}")
        A(f"s_mul_i32 s45, s44, {IL[0]}"); A(f"s_add_u32 s45, s45, {sc}"); A("s_and_b32 s45, s45, 31"); A("s_lshl_b32 s44, s44, 5"); A("s_add_u32 s45, s45, s44"); A("s_lshl_b32 s45, s45, 12")
        A(f"s_add_u32 s45, s45, {sA}")
        for u in range(4): mid(u); A(f"buffer_load_dwordx4 v{11 if u&1 else 4}, {srd}, s45 offen offset:{1024*u} {nt} lds")
        A(f"s_add_u32 {sN}, {sN}, 1"); step()
        if cnt>1: A(f"s_cmp_lg_u32 {sN}, {sR}"); A(f"s_cbranch_scc1 {lbl}")
    def wgroup(srd,base,lds,rs,v,j):
        A(f"s_mov_b32 m0, {lds+4096*j:#x}")
        if j: A(f"s_add_u32 {base}, {base}, {32*rs}")
        for u in range(4): mid(u); A(f"buffer_load_dwordx4 v{v+u}, {srd}, {base} offen offset:{1024*u} {nt} lds")
        step()
    if o.get("lprio"): A(f"s_setprio {o['lprio']}")
    assert D>=20 and IL
    A("s_lshl_b32 s30, 1, 22")
    if not o.get("hfirst",0): A("s_barrier")
    hstamp(4); A("s_waitcnt lgkmcnt(0)")
    A(f"s_mov_b64 s[32:33], {pX}"); A(f"s_mov_b64 s[28:29], {pQ}")
    if o.get("hfirst",0): A("s_barrier")
    A(f"buffer_load_dword v2, {sP}, {sT1} offen lds")
    for gr in range(4):
        A(f"s_xor_b32 m0, s46, {4096*gr:#x}" if gr else "s_mov_b32 m0, s46")
        if gr: A(f"s_xor_b32 {sB}, {sB}, {0x40000*(gr^(gr-1)):#x}")
        for u in range(4): A(f"buffer_load_dwordx4 v{11+u if u else 9}, {sL}, {sB} offen offset:{1024*u} {nt} lds")
    hstamp(1)
    hstamp(6)
    import re as _re
    SZ=dict(Q=4,K=8,V=8,O=4,U=4,W=2)
    SEQ=[(m_[0],int(m_[1:] or SZ[m_[0]])) for m_ in _re.findall(r"[A-Z]\d*",o.get("order","QKO1W1VO1U1O1U1O1U1W1U1"))]
    AT={}; tot=0; done={}
    for ch,cnt in SEQ: tot+=cnt; AT[ch]=tot
    assert tot==30 and all(sum(c_ for x,c_ in SEQ if x==ch)==SZ[ch] for ch in SZ)
    def ffn_blk(r): A(f"s_lshr_b32 s46, {sg}, 2"); A(f"s_lshl_b32 s47, {sg}, 1"); A("s_sub_u32 s46, s47, s46"); A("s_lshl_b32 s46, s46, 1"); A(f"s_add_u32 s46, s46, {r}")
    def ffn_size(r,dst):
        A(f"s_and_b32 s47, {sg}, 3"); A("s_lshl_b32 s47, s47, 2"); A(f"s_add_u32 s47, s47, {r}"); A("s_cmp_ge_u32 s47, 14"); A(f"s_cselect_b32 {dst}, 0, {512*3584:#x}")
    def load(ch,cnt):
        f=done.get(ch,0); done[ch]=f+cnt
        if ch=="K":
            if f==0: A(f"s_mov_b64 s[28:29], {pK}"); A("s_brev_b32 s30, 16")
            kv(sL,L_K,f,cnt)
        if ch=="V":
            if f==0: A(f"s_mov_b64 s[32:33], {pV}"); A("s_brev_b32 s34, 16")
            kv(sP,L_V,f+o.get("rotV",0),cnt)
        for j in range(f,f+cnt):
            if ch=="O": wgroup("s[12:15]",sB,L_WO,1024,16,j)
            if ch=="U": wgroup("s[16:19]",sT0,L_WU,3584,20,j)
            if ch=="W": wgroup("s[20:23]",sT1,L_W2,1024,16,j)
        if done[ch]==SZ[ch] and ch in "KV": hstamp(7 if ch=="K" else 8)
    def wsetup():
        A(f"s_lshl_b32 {sC}, {snb}, 7"); A("v_lshl_add_u32 v16, v7, 10, v6"); A("v_mul_u32_u24 v20, 3584, v7"); A("v_add_u32 v20, v20, v6")
        for u in range(1,4): A(f"v_add_u32 v{16+u}, {u*7168}, v16"); A(f"v_add_u32 v{20+u}, {u*(8*3584-1024)}, v20")
        A(f"s_lshl_b32 {sB}, {sg}, 2"); A(f"s_add_u32 {sB}, {sB}, {skq}"); A(f"s_lshl_b32 {sB}, {sB}, 17"); A(f"s_add_u32 {sB}, {sB}, {sC}")
        A("s_mov_b32 s14, 0x400000"); A("s_mov_b32 s15, s31")
        A(f"s_bitcmp1_b32 {snb}, 0"); A(f"s_cselect_b64 {p1}, {p3}, {p1}")
        A(f"s_lshr_b32 {sT1}, {snb}, 1"); ffn_blk(sT1); A("s_lshl_b32 s46, s46, 7"); A(f"s_mul_i32 {sT0}, {skq}, {128*3584}"); A(f"s_add_u32 {sT0}, {sT0}, s46")
        ffn_size(sT1,"s18"); A("s_mov_b32 s19, s31")
        ffn_blk(skq); A(f"s_lshl_b32 {sT1}, s46, 16"); A(f"s_add_u32 {sT1}, {sT1}, {sC}")
        ffn_size(skq,"s22"); A("s_mov_b32 s23, s31")
    assert SEQ[1][0]=="K"
    load(*SEQ[1])
    A("s_branch L_loader2")
    A("L_init:")
    A("v_lshlrev_b32 v2, 2, v0"); A(f"ds_write_b32 v2, {vZ} offset:{L_SYNC-1280}"); A("s_waitcnt lgkmcnt(0)"); A("s_branch L_args")
    A("L_roles:")
    A(f"s_cmp_eq_u32 {sw}, 1"); A("s_cbranch_scc1 L_helper")
    A(f"s_cmp_ge_u32 {sw}, 6"); A("s_cbranch_scc1 L_probe")
    if o.get("exp_nocomp"): A("s_endpgm")
    A(f"s_sub_u32 {sw}, {sw}, 2")
    A(f"s_cmp_ge_u32 {sc}, 3"); A("s_cbranch_scc1 L_nopf")
    A("s_getpc_b64 s[32:33]"); A("s_and_b32 s32, s32, 0xfffffc00"); A(f"s_mov_b32 s34, L_hotend-{NAME}_kernel+{o.get('pfx',1024)}")
    A(f"s_lshl2_add_u32 {sT0}, {sc}, {sw}"); A(f"s_lshl_b32 {sT0}, {sT0}, 10")
    A(f"buffer_load_dwordx4 v[252:255], {vL16}, {sP}, {sT0} offen offset:1024")
    A("L_nopf:")
    A("s_barrier")
    if o.get("exp_nocomp2"): A("s_endpgm")
    A("s_branch L_setup")
    A("L_probe:")
    if o.get("exp_noprobe"): A("s_endpgm")
    A(f"s_xor_b32 s51, {sw}, {sc}"); A("s_and_b32 s51, s51, 1"); A(f"s_lshl1_add_u32 s48, {sg}, s51"); A("s_lshl_b32 s48, s48, 5"); A(f"s_add_u32 s48, s48, {sc}"); A("s_lshl_b32 s48, s48, 8")
    A("s_barrier"); A("s_waitcnt lgkmcnt(0)")
    ws_srd()
    A("s_memtime s[44:45]"); A(f"s_load_dword s50, s[36:37], s48 offset:{WS_PR:#x}"); A("s_waitcnt lgkmcnt(0)"); A("s_memtime s[46:47]")
    A("s_branch L_probe2")
    A("L_exit:"); A("s_endpgm")
    A("L_helper:")
    if o.get("exp_nohelp")==2: A("s_endpgm")
    A("s_setprio 3")
    for k in range(8,12): A(f"v_mov_b32 v{k}, -1")
    A(f"v_and_b32 v2, {NREP-1}, v0"); A("v_lshlrev_b32 v2, 7, v2")
    A(f"s_lshl_b32 {sA}, {sg}, 12"); A(f"s_add_u32 {sA}, {sA}, {WS_PF:#x}")
    A(f"s_lshl_b32 {sT1}, {sg}, 17"); A(f"s_add_u32 {sT1}, {sT1}, {WS_F:#x}"); A(f"s_lshl_b32 {sC}, {sc}, 11"); A(f"s_add_u32 {sB}, {sT1}, {sC}")
    if o.get("trim",1): A(f"s_cmp_gt_u32 {sc}, 25"); A(f"s_cselect_b32 {sB}, {OOB-WS_SLOW:#x}, {sB}")
    A(f"s_andn2_b32 s44, 1, {snb}"); A("s_lshl_b32 s44, s44, 7"); A(f"s_lshl_b32 s45, {skq}, 2"); A("s_add_u32 s44, s44, s45"); A(f"s_lshr_b32 s45, {snb}, 1"); A("s_add_u32 s44, s44, s45"); A("s_lshl_b32 s44, s44, 4"); A(f"s_add_u32 s44, s44, {F_Q0:#x}")
    A(f"s_lshl_b32 s45, {skq}, 5"); A(f"s_add_u32 s45, s45, {F_ST0-256:#x}")
    A("v_and_b32 v3, 7, v0"); A("v_lshl_add_u32 v3, v3, 8, s44"); A("v_bfe_u32 v4, v0, 3, 1"); A("v_lshl_add_u32 v3, v4, 12, v3")
    A("v_cmp_gt_u32 vcc, 16, v0"); A(f"v_add_u32 v4, s45, {vL16}")
    A(f"s_cmp_eq_u32 {snb}, 0"); A("s_cselect_b32 s50, 18, 16"); A("s_bfm_b64 s[50:51], s50, 0"); A("v_cndmask_b32 v3, v4, v3, vcc")
    A("s_mov_b64 exec, s[50:51]")
    if not o.get("hfirst",0): A("s_barrier")
    hstamp(4)
    A("s_waitcnt lgkmcnt(0)")
    ws_srd()
    if o.get("exp_noq0clr"): A(f"v_mov_b32 v3, {OOB:#x}")
    A(f"buffer_store_dwordx4 v[8:11], v3, {sW}, {sT1} offen")
    A("s_mov_b64 exec, -1")
    for k in range(2):
        if k==1 and o.get("hfirst",0)==2: A("s_barrier")
        A(f"buffer_store_dwordx4 v[8:11], {vL16}, {sW}, {sB} offen offset:{1024*k}")
    if o.get("hfirst",0)==1: A("s_barrier")
    A(f"s_load_dword {stag}, s[36:37], {WS_E:#x}")
    A(f"buffer_load_dword v12, v2, {sW}, {sA} offen sc1 nt")
    if o.get("tat")==-2:
        for k in range(2): A(f"buffer_load_dwordx4 v[{20+4*k}:{23+4*k}], {vL16}, {sW}, {sB} offen offset:{1024*k} sc1 {o['ptnt']}")
    hstamp(6)
    if o.get("exp_nohelp"): A("s_endpgm")
    A("s_branch L_helper2")
    A("L_probe2:")
    A("s_mov_b64 exec, 1"); A("s_waitcnt lgkmcnt(0)")
    A("s_sub_u32 s44, s46, s44"); A("s_min_u32 s44, s44, 0x3fff"); A("s_sub_u32 s45, 0x3fff, s44"); A("s_cmp_eq_u32 s51, 1"); A("s_cselect_b32 s44, s45, s44"); A("s_add_u32 s44, s44, 0x100000")
    A("v_mov_b32 v14, s44"); A(f"ds_add_u32 {vZ}, v14 offset:{L_SYNC+20}"); A("s_waitcnt lgkmcnt(0)")
    if hops:
        A("s_mov_b64 exec, 0"); A(f"s_cmp_eq_u32 {sw}, 6"); A(f"s_cbranch_scc1 H{hops[0][0]}"); A(f"s_branch H{hops[1][0]}")
    else: A("s_endpgm")
    A("L_loader2:")
    ws_=False
    for x in SEQ[2:]:
        if x[0] in "OUW" and not ws_: hop(); wsetup(); ws_=True
        if o.get("hold") and 4+sum(done.values())==30-o["hold"]:
            for k in range(1,3):
                A(f"v_add_u32 v24, {k}, v3"); A(f"s_waitcnt vmcnt({D-4-4*k})"); A(f"ds_write_b32 {vZ}, v24 offset:{L_SYNC}")
                if 4+sum(done.values())-(D+3)//4+1+k>=AT["V"]: break
            lds_wait(3,4)
        load(*x)
    hstamp(2)
    A("s_mov_b64 exec, 1")
    for k in range((D+3)//4-2,-1,-1):
        A("v_add_u32 v3, 1, v3"); A(f"s_waitcnt vmcnt({4*k})"); A(f"ds_write_b32 {vZ}, v3 offset:{L_SYNC}")
    A("s_mov_b64 exec, -1")
    hstamp(3)
    A("s_waitcnt lgkmcnt(0)")
    A("s_branch L_ldump" if stamps and not o.get("cyc") and not o.get("nohd") else "s_endpgm")
    A("L_helper2:"); hop()
    A(f"s_getreg_b32 {sD}, hwreg(HW_REG_XCC_ID)"); A(f"s_and_b32 {sD}, {sD}, 7")
    if o.get("force_slow"): A(f"s_and_b32 {sD}, {sc}, 1")
    A(f"s_add_u32 s40, s36, {sA}"); A("s_addc_u32 s41, s37, 0")
    A(f"s_lshl_b32 {sC}, {sc}, 2"); A(f"s_add_u32 {sC}, {sC}, {sA}")
    A(f"s_lshl_b32 {sN}, {sg}, 12"); A(f"s_add_u32 {sN}, {sN}, {WS_FL:#x}"); A(f"s_lshl_b32 {sR}, {sc}, 7"); A(f"s_add_u32 {sR}, {sR}, {sN}")
    A(f"s_mov_b32 {sspin}, {SPIN}"); A(f"v_mov_b32 {vONE}, 1")
    A(f"s_waitcnt vmcnt({3 if o.get('tat')==-2 else 1})")
    A(f"ds_write_b32 {vZ}, {vONE} offset:{L_SYNC+24}")
    if o.get("tat")==-3:
        for k in range(2): A(f"buffer_load_dwordx4 v[{20+4*k}:{23+4*k}], {vL16}, {sW}, {sB} offen offset:{1024*k} sc1 {o['ptnt']}")
    A("s_mov_b32 s48, 0x200000")
    lds_wait(5,"s48")
    A("v_readfirstlane_b32 s48, v15"); A(f"s_cmp_gt_u32 s48, {0x200000+0x3fff-80:#x}"); A("s_cselect_b32 s49, 8, 0"); A(f"s_cmp_gt_u32 s48, {0x200000+0x3fff+80:#x}"); A("s_cselect_b32 s49, 16, s49")
    if stamps: A(f"s_sub_u32 {sdbg}, s48, {0x200000+0x3fff-10000:#x}")
    A(f"s_add_u32 {stag}, {stag}, {TAGK:#x}"); A(f"s_and_b32 {stag}, {stag}, 0xffffffe0")
    A(f"s_or_b32 s42, {stag}, {sD}"); A("s_mov_b32 s43, s42"); A("s_or_b32 s49, s49, s42"); A("v_mov_b32 v13, s49")
    A(f"s_bfm_b64 exec, {NREP}, 0")
    hstamp(1)
    A(f"buffer_store_dword v13, v2, {sW}, {sC} offen")
    A("s_mov_b64 exec, -1")
    def touch():
        A(f"s_mov_b32 s44, {sB}")
        if o.get("q0t",0):
            A(f"s_lshl_b32 s45, {sc}, 11"); A(f"s_add_u32 s45, s45, {sT1}"); A(f"s_add_u32 s45, s45, {F_Q0-26*2048:#x}"); A(f"s_cmp_gt_u32 {sc}, 25"); A("s_cselect_b32 s44, s45, s44")
        for k in range(2): A(f"buffer_load_dwordx4 v[{20+4*k}:{23+4*k}], {vL16}, {sW}, s44 offen offset:{1024*k} sc1 {o['ptnt']}")
    tat=o.get("tat",0) if not o.get("exp_notouch") else -1
    if tat==0: touch()
    A(f"s_mov_b32 s48, {o.get('p0',10)}"); A(f"s_mov_b32 {sC}, {NREP}")
    A("s_waitcnt vmcnt(0)" if tat else "s_waitcnt vmcnt(2)")
    A("L_hpoll:")
    lds_wait(0,"s48")
    A("v_readfirstlane_b32 s48, v15")
    A("s_load_dwordx16 s[4:19], s[40:41], 0"); A("s_load_dwordx16 s[20:35], s[40:41], 64")
    A("s_waitcnt lgkmcnt(0)")
    A("s_xor_b64 s[44:45], s[4:5], s[42:43]")
    for k in range(1,16): A(f"s_xor_b64 s[46:47], s[{4+2*k}:{5+2*k}], s[42:43]"); A("s_or_b64 s[44:45], s[44:45], s[46:47]")
    A("s_or_b32 s44, s44, s45"); A("s_andn2_b32 s44, s44, 24")
    A("s_cbranch_scc0 L_hfast")
    if stamps: A(f"s_sub_u32 {sspin}, {sspin}, 1")
    A("s_add_u32 s40, s40, 128"); A("s_addc_u32 s41, s41, 0")
    A(f"s_add_u32 s48, s48, {o.get('pstep',1)}"); A("s_min_u32 s48, s48, 20")
    A(f"s_sub_u32 {sC}, {sC}, 1"); A(f"s_cmp_lg_u32 {sC}, 0"); A("s_cbranch_scc1 L_hpoll")
    A("s_branch L_hvec")
    A("L_hfast:")
    A("s_mov_b64 exec, 1"); A("v_mov_b32 v13, 0x10001"); A(f"ds_add_u32 {vZ}, v13 offset:{L_SYNC+4}")
    hstamp(2)
    for k in range(5,36): A(f"s_add_u32 s4, s4, s{k}")
    A("s_lshl_b32 s5, s42, 5"); A("s_sub_u32 s4, s4, s5"); A("s_cmp_gt_u32 s4, 256"); A("s_cselect_b32 s49, 16, 0")
    A("L_hok:")
    A("s_and_b32 s49, s49, 16"); A("s_lshl_b32 s49, s49, 9"); A("v_mov_b32 v13, s49"); A(f"ds_write_b32 {vZ}, v13 offset:{L_SYNC+16}")
    A("s_mov_b64 exec, -1")
    A(f"s_lshl_b32 s4, {sg}, 14"); A(f"s_lshl_b32 s5, {skq}, 11"); A("s_add_u32 s4, s4, s5"); A(f"s_lshl_b32 s5, {snb}, 8"); A("s_add_u32 s4, s4, s5")
    A("v_and_b32 v3, 15, v0"); A("v_lshlrev_b32 v3, 4, v3"); A("v_and_b32 v7, 1, v1"); A("v_lshl_add_u32 v3, v7, 17, v3"); A("v_lshrrev_b32 v7, 5, v0"); A("v_lshl_add_u32 v3, v7, 13, v3")
    A(f"s_lshr_b32 s6, {snb}, 1"); A("s_lshl_b32 s6, s6, 14"); A(f"s_and_b32 s7, {snb}, 1"); A("s_lshl_b32 s7, s7, 12"); A("s_add_u32 s6, s6, s7")
    A(f"s_lshl_b32 s7, {sg}, 2"); A(f"s_add_u32 s7, s7, {skq}"); A("s_lshl_b32 s7, s7, 6"); A("s_add_u32 s6, s6, s7"); A(f"s_add_u32 s6, s6, {WS_S1:#x}")
    A("v_and_b32 v4, 3, v0"); A("v_lshlrev_b32 v4, 4, v4"); A("v_bfe_u32 v7, v0, 2, 1"); A("v_lshl_add_u32 v4, v7, 11, v4"); A("v_bfe_u32 v7, v0, 3, 1"); A("v_lshl_add_u32 v4, v7, 13, v4"); A("v_lshl_add_u32 v4, v1, 16, v4")
    if tat>0:
        lds_wait(0,tat); touch()
    lds_wait(0,o.get("clrat",23))
    A(f"buffer_store_dwordx4 v[8:11], v3, {sW}, s4 offen sc1")
    A("s_bfm_b64 exec, 32, 0")
    A(f"buffer_store_dwordx4 v[8:11], v4, {sW}, s6 offen sc1")
    A("L_hdone:")
    A("s_waitcnt vmcnt(0) lgkmcnt(0)")
    hstamp(3)
    A("s_branch L_hdump" if stamps and not o.get("cyc") and not o.get("nohd") and not o.get("nohd2") else "s_endpgm")

    A("L_setup:")
    A("v_and_b32 v2, 3, v0"); A("v_bfe_u32 v3, v0, 2, 2")
    A("v_and_b32 v10, 1, v1"); A("v_lshl_add_u32 v10, v2, 1, v10"); A("v_lshl_add_u32 v10, v10, 2, v3"); A("v_bfe_u32 v9, v0, 3, 2")
    A(f"s_lshl_b32 {sT0}, {skq}, 2"); A(f"s_add_u32 {sD}, {sT0}, {sw}")
    A(f"s_lshl_b32 {sT0}, {sD}, 6"); A(f"v_lshl_add_u32 {vOUT}, v10, 1, {sT0}")
    A("s_mov_b32 s30, 1024")
    A("s_waitcnt lgkmcnt(0)")
    stamp("k.arg")
    ws_srd()
    A(f"s_mov_b64 s[28:29], {pOUT}")
    A("s_mov_b32 s68, 0"); A("s_mov_b32 s69, -1"); A(f"s_mov_b32 {sspin}, {SPIN}")
    A(f"v_mov_b32 {vONE}, 1"); A(f"v_mov_b32 {vNAN}, -1")
    A("v_and_b32 v12, 15, v0"); A(f"v_mov_b32 v13, {OOB:#x}")
    A("v_cmp_gt_u32 s[62:63], 32, v0")
    A("v_and_b32 v14, 1, v0"); A("v_lshlrev_b32 v14, 4, v14"); A("v_mov_b32 v15, 0xffff"); A("v_lshlrev_b32 v14, v14, v15")
    A("v_lshrrev_b32 v15, 1, v12")
    for k in range(8): A(f"v_cmp_eq_u32 s[{4+2*k}:{5+2*k}], {k}, v15")
    for k in range(8): A(f"v_cndmask_b32 v{MASK+k}, 0, v14, s[{4+2*k}:{5+2*k}]")
    A("v_lshrrev_b32 v15, 3, v12"); A("v_sub_u32 v15, v1, v15")
    for u in range(2): A(f"v_cmp_eq_u32 s[{4+2*u}:{5+2*u}], {2*u}, v15")
    for k in range(4):
        A(f"v_mov_b32 v{ONES+k}, 0x3f803f80"); A(f"v_or_b32 v{SEL+k}, v{MASK+k}, v{MASK+4+k}"); A(f"v_and_b32 v{SEL+k}, v{ONES+k}, v{SEL+k}")
    for u in range(2):
        for k in range(4): A(f"v_cndmask_b32 v{SELU+4*u+k}, 0, v{SEL+k}, s[{4+2*u}:{5+2*u}]")
    A("v_and_b32 v14, 1, v0"); A("v_bfe_u32 v15, v0, 2, 1"); A("v_lshl_add_u32 v15, v15, 1, v14"); A("v_mov_b32 v14, 1.0")
    for k in range(4): A(f"v_cmp_eq_u32 s[{4+2*k}:{5+2*k}], {k}, v15")
    for k in range(4): A(f"v_cndmask_b32 v{SELT+k}, 0, v14, s[{4+2*k}:{5+2*k}]")
    A("v_lshrrev_b32 v14, 5, v0"); A("v_lshlrev_b32 v14, 14, v14"); A("v_lshl_add_u32 v14, v9, 11, v14"); A("v_and_b32 v15, 7, v0"); A("v_lshl_add_u32 v14, v15, 4, v14")
    A(f"s_lshl_b32 s48, {sD}, 7"); A(f"s_and_b32 s49, {sg}, 1"); A("s_lshl_b32 s49, s49, 17"); A("s_add_u32 s48, s48, s49"); A(f"v_add_u32 {vSG0}, s48, v14")
    A(f"s_lshl_b32 s48, {sg}, 14"); A(f"s_lshl_b32 s49, {skq}, 11"); A("s_add_u32 s48, s48, s49")
    A(f"s_lshl_b32 s49, {snb}, 8"); A("s_add_u32 s48, s48, s49"); A(f"s_lshl_b32 s49, {sw}, 6"); A("s_add_u32 s48, s48, s49")
    A(f"v_lshl_add_u32 v14, v12, 2, s48"); A("v_and_b32 v7, 1, v1"); A("v_lshrrev_b32 v8, 5, v0"); A("v_lshl_add_u32 v14, v7, 17, v14"); A(f"v_lshl_add_u32 {vSP0}, v8, 13, v14")
    A("v_bfe_u32 v14, v0, 2, 1"); A("v_lshlrev_b32 v14, 3, v14"); A("v_lshl_add_u32 v14, v2, 4, v14"); A("v_lshl_add_u32 v14, v9, 1, v14"); A(f"v_add_u32 {vXS}, s49, v14")
    hop()
    A(f"s_and_b32 s48, {sg}, 1"); A("s_lshl_b32 s48, s48, 2"); A(f"s_add_u32 s48, s48, {skq}"); A("s_lshl_b32 s48, s48, 3"); A(f"s_add_u32 s48, s48, {sw}"); A("s_lshl_b32 s48, s48, 11"); A(f"v_add_u32 {vSG}, s48, {vL16}")
    A(f"s_lshr_b32 s48, {snb}, 1"); A("s_lshl_b32 s48, s48, 14"); A(f"s_and_b32 s49, {snb}, 1"); A("s_lshl_b32 s49, s49, 12"); A("s_add_u32 s48, s48, s49")
    A(f"s_lshr_b32 s49, {sw}, 1"); A("s_lshl_b32 s49, s49, 11"); A("s_add_u32 s48, s48, s49"); A(f"s_and_b32 s49, {sw}, 1"); A("s_lshl_b32 s49, s49, 5"); A("s_add_u32 s48, s48, s49")
    A(f"s_lshl_b32 s49, {sg}, 2"); A(f"s_add_u32 s49, s49, {skq}"); A("s_lshl_b32 s49, s49, 6"); A("s_add_u32 s48, s48, s49")
    A("v_lshl_add_u32 v14, v12, 1, s48"); A("v_lshl_add_u32 v14, v7, 16, v14"); A(f"v_lshl_add_u32 {vSP}, v8, 13, v14")
    A(f"s_lshl_b32 s48, {sw}, 10"); A(f"v_add_u32 {vQG}, s48, {vL16}")
    A(f"s_load_dword {stag}, s[36:37], {WS_E:#x}")
    A(f"s_and_b32 s50, {snb}, 1"); A("s_xor_b32 s48, s50, 1"); A("s_lshl_b32 s48, s48, 2"); A(f"s_add_u32 s48, s48, {sw}"); A("s_lshl_b32 s48, s48, 9")
    A(f"s_lshl_b32 s49, {skq}, 2"); A(f"s_lshr_b32 s51, {snb}, 1"); A("s_add_u32 s49, s49, s51"); A("s_lshl_b32 s49, s49, 4"); A("s_add_u32 s48, s48, s49"); A(f"s_add_u32 s48, s48, {F_Q0:#x}")
    A("v_lshrrev_b32 v14, 3, v12"); A("v_lshlrev_b32 v14, 8, v14"); A("v_and_b32 v15, 7, v0"); A("v_lshl_add_u32 v14, v15, 1, v14"); A("v_lshl_add_u32 v14, v1, 12, v14"); A("v_add_u32 v14, s48, v14")
    A(f"v_cndmask_b32 {vQP}, v13, v14, s[62:63]")
    A("s_lshl_b32 s48, s51, 10"); A(f"s_lshl_b32 s49, {sw}, 8"); A("s_add_u32 s48, s48, s49"); A("s_lshl_b32 s49, s50, 3"); A("s_add_u32 s48, s48, s49"); A(f"s_lshl_b32 s49, {skq}, 1"); A("s_add_u32 s48, s48, s49"); A(f"s_add_u32 s48, s48, {F_U:#x}")
    A("v_lshl_add_u32 v14, v12, 4, s48"); A("v_lshl_add_u32 v14, v1, 12, v14"); A(f"v_cndmask_b32 {vUP}, v13, v14, s[62:63]")
    A(f"s_lshl_b32 s48, {skq}, 10"); A(f"s_add_u32 s48, s48, {F_U:#x}"); A(f"v_add_u32 {vUG}, s48, {vL16}")
    A("v_lshlrev_b32 v14, 3, v12"); A(f"v_add_u32 {vST}, {F_ST:#x}, v14")
    A(f"s_lshl_b32 s49, {skq}, 8"); A(f"s_add_u32 s49, s49, {F_LAM:#x}"); A("v_lshrrev_b32 v15, 5, v0"); A("v_lshl_add_u32 v14, v15, 7, v14"); A(f"v_add_u32 {vLG}, s49, v14")
    A(f"s_lshl_b32 s48, {sD}, 3"); A(f"s_add_u32 s48, s48, {F_ST:#x}"); pass
    A("v_and_b32 v15, 0x2f, v0"); A("v_cmp_eq_u32 vcc, 0, v15"); A("v_lshl_add_u32 v14, v1, 2, s48"); A(f"v_cndmask_b32 {vSTP}, v13, v14, vcc")
    A(f"v_cmp_eq_u32 vcc, {sw}, v0")
    A(f"s_lshl_b32 s48, {sw}, 11"); A(f"s_lshl_b32 s49, {sc}, 6"); A("s_add_u32 s48, s48, s49"); A("v_and_b32 v14, 60, v0"); A("v_add_u32 v14, s48, v14"); A(f"v_lshl_add_u32 {vAP}, v2, 13, v14")
    A(f"s_lshl_b32 s48, {sw}, 1"); A("s_add_u32 s48, s48, s50"); A("s_lshl_b32 s48, s48, 2"); A(f"s_add_u32 s48, s48, {skq}"); A("s_lshl_b32 s48, s48, 2"); A("s_add_u32 s48, s48, s51"); A("s_lshl_b32 s48, s48, 3"); A(f"s_add_u32 s48, s48, {F_LAM:#x}")
    A("v_mov_b32 v14, s48"); A(f"v_cndmask_b32 {vLP}, v13, v14, vcc")
    A(f"s_lshl_b32 s48, {sD}, 11"); A(f"v_add_u32 {vAG}, s48, {vL16}")
    A(f"s_lshl_b32 s49, {sw}, 6"); A("v_lshrrev_b32 v9, 2, v0")
    hop()
    A("v_and_b32 v14, 1, v2"); A("v_and_b32 v15, 1, v1"); A("v_lshl_add_u32 v14, v14, 1, v15"); A("v_lshlrev_b32 v14, 4, v14"); A("v_lshrrev_b32 v15, 1, v2"); A("v_lshl_add_u32 v14, v15, 3, v14"); A("v_lshl_add_u32 v14, v3, 1, v14")
    A(f"v_add_u32 {vXW}, s49, v14")
    A("v_cmp_eq_u32 vcc, 1, v3")
    A(f"v_lshl_add_u32 {vOR}, v1, 4, s49")
    A("v_xor_b32 v14, 18, v1"); A("v_lshlrev_b32 v14, 4, v14"); A(f"v_cndmask_b32 {vXR}, {vOR}, v14, vcc")
    CH=o.get("chain","")
    for k in range(3):
        if "Q" in CH: A(f"v_xor_b32 {vXK[k]}, {64*(k+1)}, {vXR}")
        if "O" in CH: A(f"v_xor_b32 {vOK[k]}, {64*(k+1)}, {vOR}")
    A("v_lshlrev_b32 v15, 6, v2"); A(f"v_xor_b32 v15, v15, {vOR}")
    if "Q" not in CH: A(f"v_cndmask_b32 {vXR}, v15, v14, vcc")
    if "O" not in CH: A(f"v_mov_b32 {vOR}, v15")
    A("v_lshlrev_b32 v14, 6, v1"); A("v_lshl_add_u32 v14, v2, 4, v14"); A(f"v_add_u32 v14, {L_PB}, v14")
    A(f"v_mov_b32 {vPF0}, v14"); A(f"v_xor_b32 {vPF1}, 0x80, v14")
    A(f"s_lshl_b32 s48, {sw}, 8"); A("v_lshl_add_u32 v15, v3, 2, v14"); A("v_add_u32 v15, s48, v15"); A("s_and_b32 s48, s49, 0x80"); A(f"v_xor_b32 {vPW}, s48, v15")
    A("v_lshl_add_u32 v14, v3, 8, v14"); A("v_and_b32 v15, 8, v0"); A("v_lshlrev_b32 v15, 4, v15"); A(f"v_xor_b32 {vPR}, v14, v15")
    for k in range(4): A(f"v_cmp_eq_u32 s[{4+2*k}:{5+2*k}], {k}, v3")
    A(f"v_cndmask_b32 {vAP4}, v13, {vAP}, s[4:5]")
    A(f"v_mov_b32 v15, {L_ZERO}")
    for k in range(4): A(f"v_cndmask_b32 {vPB[k]}, v15, {vPR}, s[{4+2*k}:{5+2*k}]")
    A(f"ds_write_b32 v15, {vZ}"); A(f"ds_write_b32 v15, {vZ} offset:4"); A(f"ds_write_b32 v15, {vZ} offset:8"); A(f"ds_write_b32 v15, {vZ} offset:12")
    A("v_lshrrev_b32 v14, 5, v0"); A("v_lshlrev_b32 v14, 6, v14"); A("v_lshl_add_u32 v14, v3, 4, v14"); A("v_and_b32 v15, 1, v1"); A("v_lshl_add_u32 v14, v15, 3, v14"); A("v_lshl_add_u32 v14, v2, 1, v14")
    A("s_mov_b32 s48, 0"); A(f"v_add_u32 {vHW}, s48, v14")
    A(f"v_lshlrev_b32 {vHR}, 4, v1")
    if "D" not in CH: A("v_and_b32 v14, 1, v0"); A(f"v_lshl_add_u32 {vHR}, v14, 6, {vHR}")
    A("v_bfe_u32 v15, v0, 3, 2"); A(f"v_xor_b32 v15, {sw}, v15"); A("v_lshlrev_b32 v15, 5, v15"); A("v_lshl_add_u32 v14, v9, 7, v15"); A("v_lshl_add_u32 v14, v2, 3, v14")
    A(f"s_lshl_b32 s48, {sw}, 12"); A(f"v_add_u32 {vWR}, s48, v14")
    A("v_lshlrev_b32 v14, 2, v0"); A(f"ds_write_b32 v14, v{ONES} offset:{L_ONES}"); A(f"ds_write_b32 v14, v{ONES} offset:{L_XU+256}")
    A("v_and_b32 v14, 7, v0")
    A("v_lshlrev_b32 v14, 1, v14"); A("v_xor_b32 v14, v14, v1"); A("v_lshlrev_b32 v14, 4, v14"); A("v_lshl_add_u32 v14, v12, 8, v14")
    A(f"s_lshl_b32 s48, {sw}, 13"); A(f"s_add_u32 s48, s48, {L_K:#x}"); A("v_add_u32 v7, s48, v14"); A("v_xor_b32 v7, s49, v7")
    A(f"s_lshl_b32 s48, {sw}, 1"); A("v_lshrrev_b32 v14, 1, v2"); A("v_add_u32 v14, s48, v14"); A("v_and_b32 v15, 7, v9"); A("v_xor_b32 v14, v14, v15"); A("v_lshlrev_b32 v14, 5, v14")
    A("v_lshl_add_u32 v14, v9, 8, v14"); A("v_and_b32 v15, 1, v0"); A("v_lshl_add_u32 v14, v15, 4, v14"); A(f"v_add_u32 v8, {L_V:#x}, v14")
    A("s_waitcnt vmcnt(0) lgkmcnt(0)")
    A(f"v_cndmask_b32 {vOUT}, v13, {vOUT}, s[62:63]")
    A(f"s_add_u32 {stag}, {stag}, {TAGK:#x}"); A(f"s_and_b32 {sTG}, {stag}, 0x1fff"); A(f"s_or_b32 {sTG}, {sTG}, 0x2000"); A(f"s_lshl_b32 {sTF}, {sTG}, 16")
    A(f"s_lshl_b32 s48, {sg}, 17"); A(f"s_add_u32 s48, s48, {WS_F:#x}"); A("s_add_u32 s40, s36, s48"); A("s_addc_u32 s41, s37, 0"); A(f"s_mov_b32 s42, {FSZ:#x}"); A("s_mov_b32 s43, 0x20000")
    A(f"s_mov_b32 {sA}, 0x2000"); A(f"s_mov_b32 {sB}, {F_Q0:#x}"); A(f"s_mov_b32 {sC}, {F_Q0+0x1000:#x}"); A(f"s_mov_b32 {sT0}, {F_ST0-F_ST:#x}")
    A(f"v_add_u32 {vQR[0]}, {L_QB:#x}, {vQG}")
    for k in range(1,4): A(f"v_xor_b32 {vQR[k]}, {1024*k}, {vQR[0]}")
    A("s_mov_b32 s46, 0x3b000000"); A("s_mov_b32 s47, s46")
    A(f"s_mov_b32 s10, {o.get('smB',0x42000000):#x}")
    A("s_mov_b32 s12, 0x000f000f"); A("s_mov_b32 s13, s12")
    for k in range(1,4): A(f"s_lshl_b64 s[{12+2*k}:{13+2*k}], s[12:13], {4*k}")
    def wfrags(dst,lds):
        for s in range(4):
            if s: A(f"v_xor_b32 v15, {4096*s}, {vWR}")
            for hh in range(2): A(f"ds_read_b64_tr_b16 {d(dst+4*s+2*hh)}, {'v15' if s else vWR} offset:{lds+2048*hh}")
    if o.get("cprio"): A(f"s_setprio {o['cprio']}")
    stamp("setup")
    if o.get("exp_ldone"): lds_wait(0,o["exp_ldone"]); stamp("ldone")
    lds_wait(0,4)
    stamp("wq")
    A(f"ds_read_u16_d16_hi {vCAR}, {vXS} offset:{L_XB}")
    wfrags(WQ,L_WQ)
    hop()
    lds_wait(6,1)
    A(f"v_and_b32 {vCAR}, 0xffff0000, {vCAR}")

    WARM=[]; COLD=[]
    def emit(blocks):
        for m_,f in blocks: M[0]=m_; f()
        M[0]=""
    G=T+24
    def xstat():
        return [f"v_mul_f32 v{G}, {vCAR}, {vCAR}", f"v_mov_b32 v{G+1}, {vCAR}", f"v_permlane16_swap_b32 v{G}, v{G+1}", f"v_add_f32 v{G}, v{G}, v{G+1}"]+\
               [f"v_add_f32_dpp v{G}, v{G}, v{G} "+dpp(c) for c in R16]
    def gemv(W,kind,it,scale=None,xs=None):
        X=T; Dr=T+4
        A(f"ds_read_b128 {q(X)}, {vOR if kind=='O' else vXR} offset:{dict(O=L_OB,Q=L_XB,U=L_XU)[kind]}")
        if kind!="O":
            first=(kind,it)==("Q",0)
            for k,x in enumerate(xs):
                A(x)
                if k==0: A(f"s_cmp_eq_u32 {snb}, {0 if first else sw}"); A(f"s_cselect_b32 s48, {sT0 if first else 0}, {OOB:#x}")
            fstore("buffer_store_dword",f"v{G}",vSTP,"s48",0x80*(2*it+(kind=='U')))
        yield
        A("s_waitcnt lgkmcnt(0)")
        for s in range(4): A(f"{MF} {q(Dr+4*s)}, {q(X)}, {q(W+4*s)}, 0")
        yield
        A(f"v_add_f32 v{Dr}, v{Dr}, v{Dr+5}"); A(f"v_add_f32 v{Dr}, v{Dr}, v{Dr+10}")
        if scale: A(f"v_mul_f32 v{Dr}, v{Dr}, {scale}")
        A(f"v_fmac_f32 v{Dr}, v{Dr+15}, {scale}" if scale else f"v_add_f32 v{Dr}, v{Dr}, v{Dr+15}")
        if kind!="O":
            A(f"v_cvt_pk_bf16_f32 v{Dr}, v{Dr}, v{Dr}")
            fstore("buffer_store_short",f"v{Dr}",vQP if kind=="Q" else vUP,0)
        yield
    def run(g):
        for _ in g: pass
    def wait(f):
        if int(f): A(f"s_sleep {int(f)}")
        if f!=int(f): A(f"s_nop {int((f-int(f))*16)-1}")
    def fwait(k):
        f=o.get("fwait"+k,o.get("fwait"+k[0],o["fwait"]))
        if f=="ack": A("s_waitcnt vmcnt(0)")
        else: wait(f)
    def spublish(reg,hop_):
        if hop_==0:
            A(f"v_cvt_pk_bf16_f32 v{reg}, {sTF}, v{reg}")
            A(f"buffer_store_dword v{reg}, {vSP0}, {sW}, 0 offen sc1")
        else:
            A(f"v_cvt_pk_bf16_f32 v{reg}, v{reg}, v{reg}")
            A(f"buffer_store_short v{reg}, {vSP}, {sW}, {sR} offen sc1")
    X0=T+28
    def s0load(t): A(f"buffer_load_dwordx4 {q(X0+4*t)}, {vSG0}, {sW}, {(sG1,sG2,sG3,sG0)[t]} offen sc1")
    def sack(hop_,extra=0):
        sw_=o.get(f"swait{hop_}",o["swait"])
        if sw_=="far": A(f"s_waitcnt vmcnt({extra})")
        else: wait(sw_)
    def sg_head(lbl,hop_):
        X=T; Dr=T+16; U=T+20; C=T+21
        stamp(lbl+".ack")
        if hop_==0:
            X=X0; m0_=o.get("mask0",0)
            if o.get("split0",0):
                s0load(3); A(f"s_branch {lbl}_in{M[0]}")
            elif m0_: A("s_mov_b64 vcc, -1")
            if o.get("back0"): A(f"s_branch {lbl}_f{M[0]}")
            lab(lbl); stamp(lbl+".try")
            if o.get("back0"): wait(o["back0"]); lab(lbl+"_f")
            if m0_: A("s_mov_b64 exec, vcc")
            for t in range(4): s0load(t)
            if m0_: A("s_mov_b64 exec, -1")
            spin()
            lab(lbl+"_in")
            for t in range(4):
                A(f"s_waitcnt vmcnt({3-t})")
                if t==3: stamp(lbl+".got")
                A(f"{MF} {q(Dr)}, {q(SELT)}, {q(X+4*t)}, {q(Dr) if t else 0}")
                A(f"v_bitop3_b32 v{C+1}, v{X+4*t}, v{X+4*t+1}, {sTG} bitop3:0x7e")
                A(f"v_bitop3_b32 v{C+2}, v{X+4*t+2}, v{X+4*t+3}, {sTG} bitop3:0x7e")
                A(f"v_or3_b32 v{C}, v{C+1}, v{C+2}, {'v%d'%C if t else 0}")
            A(f"v_cmp_ne_u16 vcc, 0, v{C}")
            mark(); retry(lbl)
            A(f"v_add_f32_dpp v{U}, v{Dr}, v{Dr} "+dpp("row_ror:8",0x3))
            A(f"v_add_f32_dpp v{U}, v{Dr+1}, v{Dr+1} "+dpp("row_ror:8",0xc))
        else:
            X=T+28
            def loads():
                A(f"buffer_load_dwordx4 {q(X)}, {vSG}, {sW}, {sN} offen sc1")
                A(f"buffer_load_dwordx4 {q(X+4)}, {vSG}, {sW}, {sN} offen offset:1024 sc1")
            pre=o.get(f"spipe{hop_}",o.get("spipe",()))
            for g_ in pre: loads(); A(f"s_sleep {g_}")
            bk=o.get(f"back{hop_}")
            if bk: A(f"s_branch {lbl}_f{M[0]}")
            lab(lbl); stamp(lbl+".try")
            if bk: wait(bk); lab(lbl+"_f")
            loads()
            spin()
            A(f"s_waitcnt vmcnt({1+2*len(pre)})")
            A(f"{MF} {q(Dr)}, {q(SEL)}, {q(X)}, 0")
            A(f"s_waitcnt vmcnt({2*len(pre)})")
            stamp(lbl+".got")
            A(f"{MF} {q(Dr)}, {q(SEL)}, {q(X+4)}, {q(Dr)}")
            if hop_ not in o.get("noearly",()): A(f"v_max_u32 v{C}, v{X}, v{X+4}"); A(f"v_cmp_eq_u32 vcc, -1, v{C}"); mark(); retry(lbl)
            rs4(U,C,C+1,Dr)
        if not o.get("r1"): A(f"v_cvt_pk_bf16_f32 v{U}, 0, v{U}")
        A(f"v_add_f32 v{U}, v{U}, {vCAR}")
        A(f"v_cvt_pk_bf16_f32 v{U}, 0, v{U}")
        if hop_<3: A(f"ds_write_b16_d16_hi {vXW if hop_ else vXS}, v{U} offset:{L_XB if hop_==1 else L_XU}")
        if hop_==3: A(f"buffer_store_short_d16_hi v{U}, {vOUT}, {sL}, 0 offen")
        if hop_: A(f"v_cmp_u_f32 vcc, v{U}, v{U}")
        if hop_==3: retry(lbl); return
        xs=[x.replace(vCAR,f"v{U}") for x in xstat()]
        for x in xs[:3]: A(x)
        if hop_: retry(lbl)
        stamp(lbl+".ok")
        A(xs[3]); A(f"v_mov_b32 {vCAR}, v{U}"); A(f"s_add_u32 {sN}, {sN}, {0x40000 if hop_ else WS_S1:#x}")
        npre=o.get("xpre",5)
        for x in xs[4:npre]: A(x)
        A("s_waitcnt lgkmcnt(0)"); A("s_barrier")
        stamp(lbl+".bar")
        return xs[npre:]
    def stats_ops(ST,SI,rstd):
        L=[]
        for k,c in enumerate(R16):
            for e in range(2): L.append(f"v_add_f32_dpp v{ST+e}, v{(ST if k else SI)+e}, v{(ST if k else SI)+e} "+dpp(c))
        L.append(f"v_pk_mul_f32 {d(ST)}, {d(ST)}, s[46:47]")
        L.append(f"v_fma_f32 v{ST}, -v{ST+1}, v{ST+1}, v{ST}")
        L.append(f"v_add_f32 v{ST}, |v{ST}|, s45")
        L.append(f"v_rsq_f32 v{rstd}, v{ST}")
        return L
    def rs8(u0,u1,t,Dr):
        for v in range(4): A(f"v_add_f32_dpp v{t+v}, v{Dr+v}, v{Dr+v} "+dpp("row_ror:8",0x3))
        for v in range(4): A(f"v_add_f32_dpp v{t+v}, v{Dr+4+v}, v{Dr+4+v} "+dpp("row_ror:8",0xc))
        A(f"v_add_f32_dpp {u0}, v{t}, v{t} "+dpp("row_shl:4",0x5))
        A(f"v_add_f32_dpp {u1}, v{t+1}, v{t+1} "+dpp("row_shl:4",0x5))
        A(f"v_add_f32_dpp {u0}, v{t+2}, v{t+2} "+dpp("row_shr:4",0xa))
        A(f"v_add_f32_dpp {u1}, v{t+3}, v{t+3} "+dpp("row_shr:4",0xa))
    def att_gather(it,shadow=None):
        QF=T; ST=T+16; CS=T+20; C=T+44; Dr=T+36; lbl=f"L_att{it}"
        def loads():
            A(f"buffer_load_dwordx2 {d(ST)}, {vST}, {sF}, {0 if it else sT0} offen offset:{0x100*it} sc1")
            A(f"buffer_load_dwordx4 {q(QF)}, {vQG}, {sF}, {sB} offen sc1")
            if it==0: A(f"buffer_load_dwordx4 {q(CS)}, {vQG}, {sF}, {sC} offen sc1")
        if shadow: loads(); shadow(); A(f"s_branch {lbl}_in{M[0]}")
        lab(lbl); stamp(f"a{it}.try")
        loads(); spin()
        if shadow: lab(lbl+"_in")
        st=stats_ops(ST,ST,T+18)
        A("s_waitcnt vmcnt(0)" if it else "s_waitcnt vmcnt(0) lgkmcnt(0)")
        stamp(f"a{it}.got")
        A(f"ds_write_b128 {vQR[0]}, {q(QF)}")
        if it==0: A(f"ds_write_b128 {vQR[0]}, {q(CS)} offset:4096")
        for k in range(4): A(f"v_dot2_f32_bf16 v{C}, v{QF+k}, v{ONES}, v{C if k else ST}")
        if it==0:
            for k in range(4): A(f"v_dot2_f32_bf16 v{C}, v{CS+k}, v{ONES}, v{C}")
        A(st[0]); A(st[1])
        if it: A(f"{MF} {q(Dr)}, {q(KF)}, {q(QF)}, 0")
        A(f"v_cmp_u_f32 vcc, v{C}, v{ST+1}")
        A(st[2]); A(st[3])
        if it: A(f"{MF} {q(Dr+4)}, {q(KF+16)}, {q(QF)}, 0")
        if it: mark()
        retry(lbl)
        A(st[4]); A(st[5])
        barrier(it,7)
        stamp(f"a{it}.bar0")
        return st[6:]
    def att_gather1():
        QF=T; ST=T+16; SI=T+46; C=T+44; Dr=T+36; a=T+18; lbl="L_att1"
        loadQ=lambda: A(f"buffer_load_dwordx4 {q(QF)}, {vQG}, {sF}, {sB} offen sc1")
        wait(o.get("await",1))
        lab(lbl)
        A(f"buffer_load_dwordx2 {d(SI)}, {vST}, {sF}, 0 offen offset:256 sc1")
        spin()
        A("s_waitcnt vmcnt(1)"); stamp("a1.ack"); loadQ()
        st=stats_ops(ST,SI,a)
        A("s_waitcnt vmcnt(1)")
        A(st[0]); A(st[1]); A(f"v_cmp_u_f32 vcc, v{SI}, v{SI+1}")
        for x in st[2:6]: A(x)
        retry(lbl)
        for x in st[6:]+scale_ops(): A(x)
        lab(lbl+"_q")
        A("s_waitcnt vmcnt(0)"); stamp("a1.got")
        A(f"ds_write_b128 {vQR[0]}, {q(QF)}")
        for k in range(4): A(f"v_dot2_f32_bf16 v{C}, v{QF+k}, v{ONES}, {'v%d'%C if k else 0}")
        A(f"{MF} {q(Dr)}, {q(KF)}, {q(QF)}, 0")
        A(f"v_cmp_u_f32 vcc, v{C}, v{C}")
        A(f"{MF} {q(Dr+4)}, {q(KF+16)}, {q(QF)}, 0")
        mark(); retry(lbl+"_again")
        barrier(1,7)
        stamp("a1.bar0")
        def warm():
            lab(lbl+"_again"); loadQ(); spin(False); A(f"s_branch {lbl}_q{M[0]}")
        (COLD if M[0] else WARM).append((M[0],warm))
        return None
    def scale_ops():
        ST=T+16; a=T+18
        return [f"v_mul_f32 v{a}, 0x3e0293ee, v{a}",
                f"v_mul_f32 v{a+1}, v{ST+1}, v{a}",
                f"v_pk_mul_f32 {d(ST)}, v[{vCS0[1:]}:{vCS1[1:]}], {d(a)} op_sel:[0,1] op_sel_hi:[1,1]"]
    def att_scores(it,st):
        QF=T; ST=T+16; CS=T+20; Dr=T+36; t=T+44; U=T+48; a=T+18
        if it==0:
            for s in range(1,4): A(f"ds_read_b128 {q(CS+4*s)}, {vQR[s]} offset:4096")
        for s in range(1,4): A(f"ds_read_b128 {q(QF+4*s)}, {vQR[s]}")
        if it==0:
            A("s_waitcnt lgkmcnt(3)")
            if o.get("exp_nocs"): A(f"v_mov_b32 {vCS0}, 0"); A(f"v_mov_b32 {vCS1}, 0")
            else:
                for s in range(4):
                    for tt in range(2): A(f"{MF} {q(Dr+4*tt)}, {q(KF+16*tt+4*s)}, {q(CS+4*s)}, {'0' if s==0 else q(Dr+4*tt)}")
                rs8(vCS0,vCS1,t,Dr)
            for tt in range(2): A(f"{MF} {q(Dr+4*tt)}, {q(KF+16*tt)}, {q(QF)}, 0")
        st=(st+scale_ops() if st is not None else [])+[""]*16
        for x in st[:3]: A(x)
        if it: fill("q0","")
        k=3
        for s in range(1,4):
            A(f"s_waitcnt lgkmcnt({3-s})")
            for tt in range(2):
                A(f"{MF} {q(Dr+4*tt)}, {q(KF+16*tt+4*s)}, {q(QF+4*s)}, {q(Dr+4*tt)}")
                for _ in range(1 if (tt or st[k].startswith("v_rsq")) else 2):
                    if k<len(st): A(st[k]); k+=1
        rs8(f"v{U}",f"v{U+1}",t,Dr)
        A(f"v_pk_fma_f32 {d(U)}, {d(U)}, {d(a)}, {d(ST)} op_sel_hi:[1,0,1] neg_lo:[0,0,1] neg_hi:[0,0,1]")
        m=T+50; tmp=T+51; lbl=f"L_sm{it}"
        stamp(f"a{it}.ok")
        A(f"v_exp_f32 v{t}, v{U}"); A(f"v_exp_f32 v{t+1}, v{U+1}")
        A(f"v_max_f32 v{m}, |v{U}|, |v{U+1}|")
        A(f"v_cvt_pk_bf16_f32 v{t}, v{t}, v{t+1}")
        A(f"ds_write2st64_b32 {vPW}, v{t}, {vZ} offset0:0 offset1:4")
        A(f"v_cmp_lt_f32 vcc, s10, v{m}"); retry(lbl+"_max")
        lab(lbl+"_done")
        def cold():
            lab(lbl+"_max")
            A(f"v_max_f32 v{m}, v{U}, v{U+1}")
            A(f"v_max_f32_dpp v{m}, v{m}, v{m} "+dpp("row_ror:4"))
            A(f"v_max_f32_dpp v{tmp}, v{m}, v{m} "+dpp("row_ror:8"))
            A(f"v_max_f32_dpp v{m}, v{m}, v{m} "+dpp("row_ror:8"))
            A(f"v_permlane16_swap_b32 v{m}, v{tmp}")
            A(f"v_max_f32 v{t}, v{m}, v{tmp}"); A(f"v_max_f32 v{m}, v{m}, v{tmp}")
            A(f"v_permlane32_swap_b32 v{m}, v{t}"); A(f"v_max_f32 v{m}, v{m}, v{t}")
            A(f"v_pk_add_f32 {d(U)}, {d(U)}, {d(m)} op_sel_hi:[1,0] neg_lo:[0,1] neg_hi:[0,1]")
            A(f"v_exp_f32 v{U}, v{U}"); A(f"v_exp_f32 v{U+1}, v{U+1}")
            A(f"v_cvt_pk_bf16_f32 v{U}, v{U}, v{U+1}")
            A(f"ds_write2st64_b32 {vPW}, v{U}, v{m} offset0:0 offset1:4")
            A(f"s_branch {lbl}_done{M[0]}")
        COLD.append((M[0],cold))
    def att_pv(it):
        B=T; BA=T+16; LA=T+20; ACC=T+24; m=T+32; al=T+34; Mx=T+36; Ls=T+37; t=T+40; U=T+44; lbl=f"L_pv{it}"
        stamp(f"a{it}.bar1")
        def mm(s,u): A(f"{MF} {q(ACC+4*u)}, {q(VF+8*s+4*u)}, {q(B+4*s)}, {q(ACC+4*u) if s else 0}")
        A(f"ds_read_b128 {q(B)}, {vPF0}"); A(f"ds_read_b32 v{m}, {vPR} offset:1024")
        for s in range(1,4): A(f"ds_read_b128 {q(B+4*s)}, {vPF1 if s&2 else vPF0} offset:{256*s}")
        A(f"ds_read_b128 {q(BA)}, {vPR}")
        A(f"v_mov_b32 v{Mx}, 0")
        if it and o.get("pvpad",0): padsite()
        A("s_waitcnt lgkmcnt(5)")
        mm(0,0); A("s_waitcnt lgkmcnt(3)"); A(f"v_cmp_neq_f32 vcc, 0, v{m}")
        mm(0,1); mm(1,0)
        if it and o.get("pvpad",0): mark()
        retry(lbl+"_mix")
        mm(1,1); A("s_waitcnt lgkmcnt(0)")
        la=lambda: A(f"{MF} {q(LA)}, {q(ONES)}, {q(BA)}, 0")
        l1=lambda: A(f"v_add_f32_dpp v{Ls}, v{LA}, v{LA} "+dpp("row_ror:4"))
        l2=lambda: A(f"v_add_f32_dpp v{Ls}, v{Ls}, v{Ls} "+dpp("row_ror:8"))
        cv=lambda k: A(f"v_cvt_pk_bf16_f32 v{U+k}, v{ACC+2*k}, v{ACC+2*k+1}")
        if o.get("lalast",0):
            mm(2,0); mm(3,0); mm(2,1); mm(3,1); la()
            for k in range(4): cv(k)
            fstore("buffer_store_dwordx4",q(U),vAP4,0); l1(); l2()
        else:
            mm(2,0); mm(3,0); la(); mm(2,1); mm(3,1)
            ps=o.get("pvst",2)
            if ps<2:
                l1(); cv(0); cv(1); l2()
                if ps: A("s_mov_b64 exec, s[12:13]")
                cv(2); cv(3)
                fstore("buffer_store_dwordx4",q(U),vAP4,0)
                if ps: A("s_mov_b64 exec, -1")
            else:
                cb=lambda k: A(f"v_cvt_pk_bf16_f32 v{U}, v{ACC+2*k}, v{ACC+2*k+1}")
                l1(); cb(0); A("s_nop 0"); l2()
                if o.get("mlf",1): fstore("buffer_store_dwordx2",d(Mx),vLP,0,0x400*it)
                for k in range(1,4): A(f"s_mov_b64 exec, s[{12+2*k}:{13+2*k}]"); cb(k)
                A("s_mov_b64 exec, -1")
                fstore("buffer_store_dword",f"v{U}",vAP,0)
        lab(lbl+"_done")
        if not o.get("mlf",1): fstore("buffer_store_dwordx2",d(Mx),vLP,0,0x400*it)
        def cold():
            lab(lbl+"_mix")
            A("s_waitcnt lgkmcnt(0)"); A("s_nop 7")
            for s in range(4): A(f"ds_read_b128 {q(B+4*s)}, {vPB[s]}")
            A(f"{MF} {q(LA)}, {q(ONES)}, {q(BA)}, 0")
            A(f"v_max_f32_dpp v{Mx}, v{m}, v{m} "+dpp("row_ror:4"))
            A(f"v_max_f32_dpp v{Mx}, v{Mx}, v{Mx} "+dpp("row_ror:8"))
            A(f"v_sub_f32 v{al}, v{m}, v{Mx}"); A(f"v_exp_f32 v{al}, v{al}")
            A(f"v_mul_f32 v{Ls}, v{al}, v{LA}")
            A(f"v_add_f32_dpp v{Ls}, v{Ls}, v{Ls} "+dpp("row_ror:4"))
            A(f"v_add_f32_dpp v{Ls}, v{Ls}, v{Ls} "+dpp("row_ror:8"))
            A("s_waitcnt lgkmcnt(0)")
            for s in range(4): mm(s,0); mm(s,1)
            for r in range(0,8,2): A(f"v_pk_mul_f32 {d(ACC+r)}, {d(ACC+r)}, {d(al)} op_sel_hi:[1,0]")
            rs8(f"v{U}",f"v{U+1}",t,ACC)
            A(f"v_cvt_pk_bf16_f32 v{U}, v{U}, v{U+1}")
            fstore("buffer_store_dword",f"v{U}",vAP,0)
            if o.get("mlf",1): fstore("buffer_store_dwordx2",d(Mx),vLP,0,0x400*it)
            A(f"s_branch {lbl}_done{M[0]}")
        COLD.append((M[0],cold))
    def wo_stage(it,lbl):
        X=T; LM=T+8; Dr=T+12; Mx=T+10; wv=T+11; ACC=T+28; U=T+32; Ls=T+35
        W4=T+36
        stamp(lbl+".ack"); lab(lbl); stamp(lbl+".try")
        A(f"buffer_load_dwordx2 {d(LM)}, {vLG}, {sF}, 0 offen offset:{0x400*it} sc1")
        A(f"buffer_load_dwordx4 {q(X)}, {vAG}, {sF}, 0 offen sc1")
        A(f"buffer_load_dwordx4 {q(X+4)}, {vAG}, {sF}, 0 offen offset:1024 sc1")
        spin()
        sm=lambda k,src=None: A(f"v_add_f32_dpp v{Ls}, v{src or Ls}, v{src or Ls} "+dpp(R16[k]))
        A("s_waitcnt vmcnt(2)")
        A(f"v_cmp_neq_f32 vcc, 0, v{LM}")
        sm(0,LM+1)
        we=o.get("wearly",1)
        A("s_waitcnt vmcnt(1)")
        A(f"{MF} {q(Dr)}, {q(SEL)}, {q(X)}, 0")
        if we:
            if not o.get("mlf",1): mark()
            retry(lbl+"_chk")
        A("s_waitcnt vmcnt(0)"); stamp(lbl+".got")
        A(f"{MF} {q(Dr)}, {q(SEL)}, {q(X+4)}, {q(Dr)}")
        if o.get("mlf",1):
            assert we
            A(f"v_max_u32 v{U}, v{X}, v{X+4}"); A(f"v_cmp_eq_u32 vcc, -1, v{U}"); sm(1); sm(2); mark(); retry(lbl)
        else:
            if not we: mark(); retry(lbl+"_chk")
            sm(1)
            sm(2)
        rs4(U,U+1,U+2,Dr)
        lab(lbl+"_sum")
        A(f"v_cvt_pk_bf16_f32 v{U+1}, v{U}, v{U}")
        A(f"ds_write_b16 {vXW}, v{U+1} offset:{L_OB}")
        A(f"v_cmp_u_f32 vcc, v{U}, v{Ls}")
        A(f"v_add_f32_dpp v{U}, v{Ls}, v{Ls} "+dpp(R16[3]))
        def warm():
            lab(lbl+"_chk")
            A(f"v_cmp_u_f32 vcc, v{LM}, v{LM+1}"); retry(lbl); A(f"s_branch {lbl}_mix{M[0]}")
        def cold():
            lab(lbl+"_mix")
            A("s_waitcnt vmcnt(0)"); A("s_nop 7")
            for k in range(4): A(f"{MF} {q(Dr+4*k)}, {q(SELU+4*(k&1))}, {q(X+4*(k>>1))}, 0")
            for k in range(4): A(f"v_max_f32_dpp v{Mx}, v{Mx if k else LM}, v{Mx if k else LM} "+dpp(R16[k]))
            A(f"v_mov_b32 v{wv}, v{Mx}"); A(f"v_permlane32_swap_b32 v{Mx}, v{wv}"); A(f"v_max_f32 v{Mx}, v{Mx}, v{wv}")
            A(f"v_sub_f32 v{wv}, v{LM}, v{Mx}"); A(f"v_exp_f32 v{wv}, v{wv}")
            A(f"v_mul_f32 v{Ls}, v{wv}, v{LM+1}")
            for k in range(4):
                for r in range(4):
                    A(f"{'v_mul_f32_dpp' if k==0 else 'v_fmac_f32_dpp'} v{ACC+r}, v{wv}, v{Dr+4*k+r} "+dpp(f"quad_perm:[{k},{k},{k},{k}]"))
            for k in range(3): sm(k)
            rs4(U,U+1,U+2,ACC)
            A(f"v_mov_b32 v{U+1}, v{U}")
            A(f"v_permlane32_swap_b32 v{U}, v{U+1}"); A(f"v_add_f32 v{U}, v{U}, v{U+1}")
            A(f"s_branch {lbl}_sum{M[0]}")
        (COLD if M[0] else WARM).append((M[0],warm)); COLD.append((M[0],cold))
        retry(lbl)
        stamp(lbl+".ok")
        A(f"v_mov_b32 v{Ls}, v{U}")
        A("s_waitcnt lgkmcnt(0)"); A("s_barrier")
        stamp(lbl+".bar")
        if it==0: A(f"ds_read_b32 v15, {vZ} offset:{L_SYNC+16}")
        g=gemv(WO,"O",it,f"v{Ls}"); next(g)
        A(f"v_permlane32_swap_b32 v{Ls}, v{U}"); A(f"v_add_f32 v{Ls}, v{Ls}, v{U}"); A(f"v_rcp_f32 v{Ls}, v{Ls}")
        next(g)
        next(g)
        spublish(T+4,2*it)
        if it==0:
            A(f"v_readfirstlane_b32 {sN}, v15")
    def down_stage(it,lbl):
        G=T+4; Uq=T+5; E=T+6; ST=T+8; rs=T+10; X=T+12; Dr=T+16
        P=T+36; SI=T+40; CS=T+44
        Bq=T+2; nP=2 if it==0 else 1
        def loadP():
            A(f"buffer_load_dwordx4 {q(P)}, {vUG}, {sF}, {sA if it else 0} offen sc1")
            if it==0: A(f"buffer_load_dwordx4 {q(CS)}, {vUG}, {sF}, {sT0} offen sc1")
        dot=lambda dst,src,acc: A(f"v_dot2_f32_bf16 {dst}, v{src}, v{ONES}, {acc}")
        stamp(lbl+".ack"); lab(lbl)
        A(f"buffer_load_dwordx2 {d(SI)}, {vST}, {sF}, 0 offen offset:{0x100*it+0x80} sc1")
        spin(); wait(o.get("dgap",1)); loadP()
        st=stats_ops(ST,SI,rs)
        A(f"s_waitcnt vmcnt({nP})")
        A(st[0]); A(st[1]); A(f"v_cmp_u_f32 vcc, v{SI}, v{SI+1}")
        A(st[2]); A(st[3]); loadP()
        A(st[4]); A(st[5]); retry(lbl)
        for x in st[6:]: A(x)
        if it: A(f"v_pk_mul_f32 {d(Bq)}, {d(ST)}, v[{vCSG[1:]}:{vCSU[1:]}] op_sel:[1,0] neg_lo:[1,0] neg_hi:[1,0]")
        A(f"v_mul_f32 v{rs+1}, 0xbfb8aa3b, v{rs}")
        lab(lbl+"_p")
        A(f"s_waitcnt vmcnt({nP})"); stamp(lbl+".got")
        if it==0:
            dot(vCSG,CS,0); dot(vCSU,CS+2,0); dot(vCSG,CS+1,vCSG); dot(vCSU,CS+3,vCSU)
            A(f"v_pk_mul_f32 {d(Bq)}, {d(ST)}, v[{vCSG[1:]}:{vCSU[1:]}] op_sel:[1,0] neg_lo:[1,0] neg_hi:[1,0]")
        dot(f"v{G}",P,f"v{Bq}"); dot(f"v{G}",P+1,f"v{G}"); dot(f"v{Uq}",P+2,f"v{Bq+1}"); dot(f"v{Uq}",P+3,f"v{Uq}")
        A(f"v_mul_f32 v{E}, v{G}, v{rs+1}")
        A(f"v_exp_f32 v{E}, v{E}")
        A(f"v_cmp_u_f32 vcc, v{G}, v{Uq}")
        def warm():
            lab(lbl+"_again"); loadP(); spin(False); A(f"s_branch {lbl}_p{M[0]}")
        (COLD if M[0] else WARM).append((M[0],warm))
        A(f"v_add_f32 v{E}, 1.0, v{E}")
        A(f"v_rcp_f32 v{E}, v{E}")
        A(f"v_pk_mul_f32 {d(G)}, {d(G)}, {d(rs)} op_sel_hi:[1,0]")
        A(f"v_mul_f32 v{G}, v{G}, v{E}")
        if o.get("dbr",1): mark(); retry(lbl+"_again")
        A(f"v_mul_f32 v{G}, v{G}, v{Uq}")
        A(f"v_cvt_pk_bf16_f32 v{E}, v{G}, v{G}")
        A(f"ds_write_b16 {vHW}, v{E} offset:{L_HB}")
        if not o.get("dbr",1): retry(lbl+"_again")
        stamp(lbl+".ok")
        A("s_waitcnt lgkmcnt(0)"); lab(lbl+"_b")
        A("s_barrier")
        A(f"ds_read_b128 {q(X)}, {vHR} offset:{L_HB}")
        if "D" in CH:
            A(f"ds_read_b128 {q(Dr+4)}, {vHR} offset:{L_HB+64}")
            A("s_waitcnt lgkmcnt(1)"); A(f"{MF} {q(Dr)}, {q(X)}, {q(W2)}, 0")
            A("s_waitcnt lgkmcnt(0)"); A(f"{MF} {q(Dr)}, {q(Dr+4)}, {q(W2+4)}, {q(Dr)}")
        else:
            A("s_waitcnt lgkmcnt(0)")
            A(f"{MF} {q(Dr)}, {q(X)}, {q(W2)}, 0"); A(f"{MF} {q(Dr+4)}, {q(X)}, {q(W2+4)}, 0")
            A(f"v_add_f32 v{Dr}, v{Dr}, v{Dr+5}")
        spublish(Dr,2*it+1)

    def bumpE():
        A(f"s_or_b32 s48, s2, {sw}"); A(f"s_cselect_b32 s48, {OOB:#x}, 0"); A(f"s_add_u32 s48, s48, {WS_E:#x}"); A(f"v_mov_b32 v15, {stag}")
        A(f"buffer_store_dword v15, {vZ}, {sW}, s48 offen sc1")
    def clr23():
        for r_ in ("s50","s51"): A(f"buffer_store_dword {vNAN}, v12, {sW}, {r_} offen sc1")
    def w2frags():
        A(f"v_and_b32 v15, 0xfff, {vWR}")
        for t in range(2):
            for hh in range(2): A(f"ds_read_b64_tr_b16 {d(W2+4*t+2*hh)}, v15 offset:{L_W2+4096*t+2048*hh}")
    def chain():
        rid[0]=0
        A("s_mov_b32 s45, 0x3727c5ac")
        run(gemv(WQ,"Q",0,xs=xstat()))
        stamp("Qpub0")
        if not M[0] and not o.get("exp_nohs"):
            lds_wait(1,1,mask=True)
            A("v_readfirstlane_b32 s44, v15"); A("s_lshr_b32 s44, s44, 16"); A("s_cbranch_scc0 L_slow")
        stamp("B1")
        A(f"v_cmp_gt_u32 vcc, 16, v0"); A(f"v_subrev_u32 {vQP}, {F_Q0-F_Q1:#x}, {vQP}"); A(f"v_cndmask_b32 {vQP}, v13, {vQP}, vcc")
        if o["qwait"]=="ack": A("s_waitcnt vmcnt(0)")
        else: lds_wait(0,o["qwait"])
        def kfrags():
            stamp("qiss")
            lds_wait(0,AT["K"])
            stamp("K")
            for s in range(4):
                if s: A(f"v_xor_b32 v15, {64*s}, v7")
                for t in range(2): A(f"ds_read_b128 {q(KF+16*t+4*s)}, v{15 if s else 7} offset:{4096*t}")
        st=att_gather(0,kfrags)
        stamp("qgot0")
        att_scores(0,st)
        barrier(0,2)
        stamp("qg0")
        A(f"s_mov_b32 {sB}, {F_Q1:#x}"); A(f"s_mov_b32 {sT0}, 0x1000")
        hop()
        if AT["O"]<AT["V"]:
            if AT["O"]>AT["K"]: lds_wait(0,AT["O"])
            wfrags(WO,L_WO)
        vs=o.get("vsplit",0)
        assert not vs or IL[1]==0
        for e in range(8):
            if e==0 and vs: lds_wait(0,AT["V"]-(8-vs))
            if e==vs: lds_wait(0,AT["V"]); stamp("V")
            for hh in range(2): A(f"ds_read_b64_tr_b16 {d(VF+4*e+2*hh)}, v8 offset:{8192*(e>>1)+4096*hh+8*(e&1)}")
        att_pv(0)
        if o.get("hold"): lds_arrive(3)
        stamp("Apub0")
        hop()
        if AT["O"]>AT["V"]: lds_wait(0,AT["O"]); wfrags(WO,L_WO)
        ww=o.get("wwait","ack")
        if ww=="ack": A("s_waitcnt vmcnt(0)")
        else: lds_wait(0,ww)
        stamp("all")
        for it in range(2):
            wo_stage(it,f"L_wo{it}")
            stamp(f"WOpub{it}")
            if it==0:
                A(f"s_lshr_b32 {sG0}, {sg}, 1"); A(f"s_lshl_b32 {sG0}, {sG0}, 15"); A(f"s_add_u32 {sG0}, {sG0}, {sN}")
                for k,r_ in enumerate((sG1,sG2,sG3)): A(f"s_xor_b32 {r_}, {sG0}, {0x8000*(k+1):#x}")
                A(f"v_readfirstlane_b32 s48, {vSP}"); A("s_andn2_b32 s48, s48, 0x2820"); A(f"s_mul_i32 s49, {sw}, {sw}"); A("s_lshl_b32 s49, s49, 16"); A("s_add_u32 s48, s48, s49"); A(f"s_add_u32 s48, s48, {WS_S1+0x40000:#x}")
                A(f"s_cmp_eq_u32 {sw}, 3"); A(f"s_cselect_b32 s48, {OOB:#x}, s48")
                A("v_and_b32 v14, 15, v0"); A("v_lshlrev_b32 v14, 2, v14"); A("v_and_b32 v15, 1, v1"); A("v_lshl_add_u32 v14, v15, 11, v14"); A("v_lshrrev_b32 v15, 5, v0"); A("v_lshl_add_u32 v14, v15, 13, v14")
                A(f"buffer_store_dword {vNAN}, v14, {sW}, s48 offen sc1")
                wfrags(WU,L_WU)
                if o.get("w2early",1): w2frags()
                if o.get("split0",0):
                    wait(o.get("s0a",0))
                    for t in range(3): s0load(t)
            if it==1 and o.get("bumpat",1)==2: bumpE()
            sack(2*it,(1+3*o.get("split0",0)) if it==0 else 0)
            run(gemv(WU,"U",it,xs=sg_head(f"L_su{it}",2*it)))
            A(f"s_mov_b32 {sR}, {WS_S1+0x40000*2*it:#x}")
            if it==0 and o.get("lateclr",1)==3: clr23()
            stamp(f"Upub{it}")
            if it==0:
                A(f"v_cmp_gt_u32 vcc, 16, v0")
                A(f"v_add_u32 {vUP}, 0x2000, {vUP}"); A(f"v_cndmask_b32 {vUP}, v13, {vUP}, vcc")
                A(f"ds_read_u16_d16_hi {vCAR}, {vXW} offset:{L_XU}")
                if not o.get("w2early",1):
                    w2frags(); A("s_waitcnt lgkmcnt(0)")
            else:
                A("v_and_b32 v14, 16, v0"); A("v_cmp_eq_u32 vcc, 0, v14"); A(f"v_cndmask_b32 {vSP}, v13, {vSP}, vcc")
            A(f"s_cmp_eq_u32 {sw}, {o.get('dw',3)}"); A(f"s_cbranch_scc0 L_dn{it}_b{M[0]}")
            fwait(f"D{it}")
            down_stage(it,f"L_dn{it}")
            if it and o.get("wb") and not M[0]: A(f"buffer_store_dword {vNAN}, {vAP}, {sF}, 0 offen sc1")
            stamp(f"Dpub{it}")
            if it==0:
                fstore("buffer_store_dword",vNAN,vAP,0)
                if o.get("bumpat",1)==1: bumpE()
                sack(1,2 if o.get("bumpat",1)==1 else 1)
                run(gemv(WQ,"Q",1,xs=sg_head("L_sq1",1)))
                A(f"s_mov_b32 {sR}, {WS_S1+0x40000:#x}")
                stamp("Q.pub1")
                if o.get("aearly",1): att_scores(1,att_gather1())
                else: fwait("A"); stamp("a1.ack"); att_scores(1,att_gather(1))
                fill("p0",""); A("s_waitcnt lgkmcnt(0)"); fill("p1",""); A("s_barrier"); fill("p2","")
                att_pv(1)
                stamp("A.pub1")
                fwait("W")
    chain()
    A("L_last:")
    A(f"s_xor_b32 s48, {snb}, {sw}"); A(f"s_or_b32 s48, s48, {sg}"); A("s_cbranch_scc1 L_fin")
    sack(3)
    sg_head("L_sf",3)
    A("L_fin:")
    if o.get("pad"):
        stamp("end") if not stamps else None
        A("s_waitcnt lgkmcnt(0)")
        if o["pad"][1]=="none": A("s_mov_b32 s72, s70")
        if len(o["pad"])>2: A("s_sub_u32 s72, s72, s70"); A(f"s_mul_i32 s72, s72, {o['pad'][2]}"); A("s_add_u32 s72, s72, s70")
        if len(o["pad"])>3: A(f"s_cmp_eq_u32 s2, {o['pad'][3]}"); A("s_cbranch_scc0 L_exit")
        A(f"s_add_u32 s72, s72, {o['pad'][0]}")
        A("L_pad:"); A("s_memrealtime s[74:75]"); A("s_waitcnt lgkmcnt(0)"); A("s_sub_u32 s76, s74, s72"); A("s_cmp_lt_i32 s76, 0"); A("s_cbranch_scc1 L_pad")
    if stamps: stamp("end"); dump(sw)
    A("s_endpgm")
    if o.get("hopend"): hop()
    emit(WARM)
    A("L_hotend:")
    A("L_giveup:")
    A("s_waitcnt vmcnt(0)")
    if stamps: A("s_or_b32 s3, s3, 0x100")
    bumpE()
    for wd in (2,3,7): A(f"ds_add_u32 {vZ}, {vONE} offset:{L_SYNC+4*wd}")
    A(f"s_xor_b32 s48, {snb}, {sw}"); A(f"s_or_b32 s48, s48, {sg}"); A("s_cbranch_scc1 L_fin")
    A(f"buffer_store_short {vNAN}, {vOUT}, {sL}, 0 offen"); A("s_branch L_fin")
    A("L_hvec:")
    A("v_and_b32 v13, 31, v0"); A("v_lshlrev_b32 v14, 2, v13"); A("v_lshlrev_b32 v15, 7, v13")
    A("v_mov_b32 v16, s42"); A("s_mov_b64 exec, 1")
    A(f"buffer_store_dword v16, {vZ}, {sW}, {sR} offen sc1")
    A("s_mov_b64 exec, -1")
    A("L_hvec1:")
    A(f"buffer_load_dword v17, v14, {sW}, {sA} offen sc1")
    A(f"buffer_load_dword v18, v15, {sW}, {sN} offen sc1")
    A("v_mov_b32 v13, 1")
    A(f"s_sub_u32 {sspin}, {sspin}, 1"); A("s_cbranch_scc1 L_hsig")
    A("s_waitcnt vmcnt(0)")
    A("v_and_b32 v17, 0xffffffe7, v17"); A("v_mov_b32 v13, 0x10001")
    A("v_cmp_ne_u32 vcc, s42, v17"); A("s_cbranch_vccz L_hsig")
    A(f"v_xor_b32 v19, {stag}, v18"); A("v_cmp_lt_u32 vcc, 7, v19"); A("s_cbranch_vccnz L_hvec1")
    A("v_cmp_ne_u32 vcc, s42, v18"); A("s_cbranch_vccz L_hvec1")
    A(f"s_add_u32 {sB}, {sB}, {WS_SLOW:#x}"); A(f"s_add_u32 {sT1}, {sT1}, {WS_SLOW:#x}")
    A("s_mov_b64 exec, s[50:51]"); A(f"buffer_store_dwordx4 v[8:11], v3, {sW}, {sT1} offen sc1"); A("s_mov_b64 exec, -1")
    for k in range(2): A(f"buffer_store_dwordx4 v[8:11], {vL16}, {sW}, {sB} offen offset:{1024*k} sc1")
    A(f"v_mov_b32 v16, {stag}"); A("v_mov_b32 v13, 1")
    A("s_waitcnt vmcnt(0)")
    A("s_mov_b64 exec, 1")
    A(f"buffer_store_dword v16, {vZ}, {sW}, {sR} offen offset:4 sc1")
    A("s_mov_b64 exec, -1")
    A("L_hvec2:")
    A(f"buffer_load_dword v18, v15, {sW}, {sN} offen offset:4 sc1")
    A(f"s_sub_u32 {sspin}, {sspin}, 1"); A("s_cbranch_scc1 L_hsig")
    A("s_waitcnt vmcnt(0)")
    A(f"v_cmp_ne_u32 vcc, {stag}, v18"); A("s_cbranch_vccnz L_hvec2")
    A("L_hsig:")
    A("s_mov_b64 exec, 1"); A(f"ds_add_u32 {vZ}, v13 offset:{L_SYNC+4}")
    hstamp(2)
    A("s_branch L_hok")
    if stamps:
        A("L_hdump:"); A("s_mov_b64 exec, -1"); dump("4"); A("s_endpgm")
        A("L_ldump:"); ws_srd(); dump("5"); A("s_endpgm")
    A("L_slow:")
    A(f"s_add_u32 s40, s40, {WS_SLOW:#x}"); A("s_addc_u32 s41, s41, 0")
    M[0]="s"; chain(); A("s_branch L_last"); emit(COLD)
    txt=HEADER+f"; @launch grid=(256,1,1) block=(512,1,1) lds={LDS_BYTES}\n"
    txt+=f""".amdgcn_target "amdgcn-amd-amdhsa--gfx950"
.text
.globl {NAME}_kernel
.p2align 12
.fill 832, 4, 0xbf810000
.p2align 8
.type {NAME}_kernel,@function
{NAME}_kernel:
"""+A.text()+f""".section .rodata,"a"
.p2align 6
.amdhsa_kernel {NAME}_kernel
  .amdhsa_next_free_vgpr 256
  .amdhsa_next_free_sgpr 102
  .amdhsa_accum_offset 256
  .amdhsa_group_segment_fixed_size 0
  .amdhsa_kernarg_size 96
  .amdhsa_user_sgpr_count 2
  .amdhsa_user_sgpr_kernarg_segment_ptr 1
  .amdhsa_system_sgpr_workgroup_id_x 1
  .amdhsa_float_denorm_mode_32 3
.end_amdhsa_kernel
"""
    return txt, names
def labels(txt):
    import subprocess,re
    open("_h.s","w").write(txt.replace(".fill 832, 4",".fill 1024, 4"))
    subprocess.run(["clang","-x","assembler","-target","amdgcn-amd-amdhsa","-mcpu=gfx950","-c","_h.s","-o","_h.o"],check=True)
    out=subprocess.run(["llvm-readelf","-s","-W","_h.o"],capture_output=True,text=True).stdout
    L={m.group(2):int(m.group(1),16) for m in re.finditer(r"^\s*\d+: ([0-9a-f]+) .* (\S+)$",out,re.M)}
    return {k:v-L[NAME+"_kernel"] for k,v in L.items()}
def gen(stamps=False, opts=None):
    o=dict(opts or {})
    if o.get("warm",1)==0: o["_hops"]=None; return gen1(stamps,o)
    L=labels(gen1(stamps,o)[0])
    c=sorted((v,int(k[2:])) for k,v in L.items() if k.startswith("HC")); end=L["L_hotend"]
    pick=[]; last=None
    for i,(a,k) in enumerate(c):
        nxt=(c[i+1][0] if i+1<len(c) else end)
        if last is None or nxt-last>o.get("hopgap",640): pick.append(k); last=a
    page=[]
    for _ in range(4):
        pk=sorted(set(pick)|set(page)); h=(len(pk)+1)//2
        o["_hops"]=[pk[:h][::-1],pk[h:][::-1]]; o["_page"]=page; o["_pads"]={}
        if o.get("bral",1):
            for k in sorted(int(x[2:]) for x in L if x.startswith("BR")):
                o["_pads"][k]=((o.get("brk",{}).get(k,o.get("brat",4))-labels(gen1(stamps,o)[0])[f"BR{k}"])%o.get("brmod",64))//4
        if not o.get("pageal",1): break
        L2=labels(gen1(stamps,o)[0]); c2=sorted((v,int(k[2:])) for k,v in L2.items() if k.startswith("HC"))
        miss=[k for i,(a,k) in enumerate(c2) if k not in page and -a%4096<=o.get('pagemax',700) and a//4096!=((c2[i+1][0] if i+1<len(c2) else L2["L_hotend"])-4)//4096]
        if not miss: break
        page=page+miss[:1]
    return gen1(stamps,o)
if __name__=="__main__":
    txt,names=gen(stamps=False)
    open(sys.argv[1] if len(sys.argv)>1 else "cdna_kernels/"+NAME+".s","w").write(txt)
```

```python
import sys
from emit import Asm
NAME="interleave_layers__sliding_block_cached__glu_gated_swiglu__decode"
HEADER=open("cdna_kernels/"+NAME+".s.ref").read().split("; Override launch")[0]

WS_PR=0x60000; WS_FL=0x50000; WS_E=0x40000; WS_PF=0x48000; WS_F=0x200000; FSZ=0x20000; WS_SLOW=0x100000; WS_DBG=0x400000; WS_S1=0x80000
F_ATT=0; F_Q1=0x8000; F_U=0x9000; F_LAM=0xC000; F_ST=0xC800; F_Q0=0x10000; F_ST0=0x12000
OOB=0x3ff00000; TAGK=0x9E376001; NREP=16
L_WQ=0; L_WO=0x4000; L_WU=0x8000; L_W2=0xC000; L_XB=0xE000; L_ONES=0xE100; L_OB=0xE200; L_SYNC=0xE380; L_PB=0xE800; L_ZERO=0xE300; L_OB1=0xF800; L_HB=0xF900; L_XU=0xE600
L_K=0x10000; L_V=0x18000; L_OBUF=0; L_QB=0x20000; LDS_BYTES=0x22000
pX,pK,pV,pQ,pO,_,p1,p3,p2,pOUT,_,pWS=[f"s[{i}:{i+1}]" for i in range(4,28,2)]
sL,sP,sW,sF="s[28:31]","s[32:35]","s[36:39]","s[40:43]"
sg,sc,skq,snb,sw,stag,sdbg,sspin,sT0,sT1,sN,sR,sA,sB,sC,sD="s52 s53 s54 s55 s56 s57 s58 s59 s60 s61 s62 s63 s64 s65 s66 s67".split()
sHI="s[68:69]"; STAMP0=70
sTG,sTF,sG1,sG2,sG3,sG0="s4","s5","s6","s7","s8","s9"
def q(b): return f"v[{b}:{b+3}]"
def d(b): return f"v[{b}:{b+1}]"
WQ,WO,WU,W2,KF,VF=16,32,48,64,72,104
SEL,SELU,MASK,ONES,PB=136,140,148,156,160
vPB=[f"v{160+k}" for k in range(4)]; vQR=[f"v{164+k}" for k in range(4)]; vPF0,vPF1,vAP4="v168","v169","v170"; vXK=["v171","v172","v173"]; vOK=["v148","v149","v150"]
SELT=152
(vSG,vSP,vQP,vL16,vST,vSTP,vAP,vLP,vAG,vLG,vUP,vUG,vXW,vXR,vOR,vPW,vPR,vHW,vHR,vCAR,vCS0,vCS1,vCSG,vCSU,vOUT,vWR,vNAN,vQG)=[f"v{i}" for i in range(176,204)]
vZ,vONE,vXS,vSG0,vSP0="v5","v6","v4","v10","v11"
T=204
SPIN=1<<16
MF="v_mfma_f32_16x16x32_bf16"

def gen1(stamps=False, opts=None):
    o=dict(nt="nt",ptnt="nt",D=24,qwait="ack",fwait="ack",fwaitD=2,swait3=8,swait="far",copies=4,early=1,mask=0)
    o.update(opts or {})
    NREP=o.get('nrep',8)
    A=Asm(); A.timed=o.get("timed",1); nt=o["nt"]; D=o["D"]
    names=[]; M=[""]
    def stamp(name):
        if o.get("pad") and name==o["pad"][1]: A("s_memrealtime s[72:73]")
        if not stamps: return
        if o.get("only") is not None:
            if name not in o["only"]: return
        elif name in ("WOpub1","Upub1","setup") or "." in name: return
        if name not in names: names.append(name)
        k=STAMP0+2*names.index(name); assert k+1<=101
        A(f"{'s_memtime' if o.get('cyc') else 's_memrealtime'} s[{k}:{k+1}]")
    def hstamp(k):
        if stamps: A(f"s_memrealtime s[{STAMP0+2*k}:{STAMP0+2*k+1}]")
    def dpp(ctrl,bank=0xf): return f"{ctrl} row_mask:0xf bank_mask:{bank:#x}"
    def fstore(op,data,addr,soff,off=0):
        A(f"{op} {data}, {addr}, {sF}, {soff} offen offset:{off}{' sc1' if M[0] else ''}")
    rid=[0]
    def spin(site=True):
        rid[0]+=1
        if stamps:
            A(f"s_mov_b32 s3, {rid[0]}")
            if rid[0]<=10: A(f"s_add_u32 {sdbg}, {sdbg}, {1<<(3*(rid[0]-1))}")
        A(f"s_sub_u32 {sspin}, {sspin}, 1"); A("s_cbranch_scc1 L_giveup")
        if site: hop(); padsite()
    pid=[0]
    def padsite():
        if not M[0]:
            pid[0]+=1
            n_=o.get("_pads",{}).get(pid[0],0)
            if n_>2: A(f"s_branch PD{pid[0]}"); A.raw(f".fill {n_-1}, 4, 0xbf800000"); A(f"PD{pid[0]}:")
            else:
                for _ in range(n_): A("s_nop 0")
    def mark():
        if not M[0]: A(f"BR{pid[0]}:")
    hops=o.get("_hops"); hid=[0]
    def hop():
        if M[0]: return
        hid[0]+=1; k=hid[0]
        A(f"HC{k}:")
        if "_hops" not in o: return
        if k in o.get("_page",()): A(f"s_branch H{k}"); A.raw(".p2align 12")
        for ch in hops or []:
            if k in ch:
                i=ch.index(k); A(f"H{k}:"); A(f"s_cbranch_execz {'H%d'%ch[i+1] if i+1<len(ch) else 'L_exit'}")
    def lab(l): A(f"{l}{M[0]}:")
    def retry(l): A(f"s_cbranch_vccnz {l}{M[0]}")
    def head(l):
        lab(l)
        if o["mask"]: A("s_mov_b64 vcc, -1"); lab(l+"_m")
    def mon():
        if o["mask"]: A("s_mov_b64 exec, vcc")
    def moff():
        if o["mask"]: A("s_mov_b64 exec, -1")
    def mretry(l): retry(l+"_m" if o["mask"] else l)
    def rs4(dst,t0,t1,Dr):
        A(f"v_add_f32_dpp v{t0}, v{Dr}, v{Dr} "+dpp("row_ror:8",0x3))
        A(f"v_add_f32_dpp v{t1}, v{Dr+1}, v{Dr+1} "+dpp("row_ror:8",0x3))
        A(f"v_add_f32_dpp v{t0}, v{Dr+2}, v{Dr+2} "+dpp("row_ror:8",0xc))
        A(f"v_add_f32_dpp v{t1}, v{Dr+3}, v{Dr+3} "+dpp("row_ror:8",0xc))
        A(f"v_add_f32_dpp v{dst}, v{t0}, v{t0} "+dpp("row_shl:4",0x5))
        A(f"v_add_f32_dpp v{dst}, v{t1}, v{t1} "+dpp("row_shr:4",0xa))
    R16=["quad_perm:[1,0,3,2]","quad_perm:[2,3,0,1]","row_ror:4","row_ror:8"]
    def ws_srd():
        A("s_add_u32 s36, s26, 0x1fffff"); A("s_addc_u32 s37, s27, 0"); A("s_and_b32 s36, s36, 0xffe00000")
    wid=[0]
    def lds_wait(word,n,mask=False):
        wid[0]+=1
        A(f"L_w{wid[0]}:")
        if word==0 and o.get("psleep"): A(f"s_sleep {o['psleep']}")
        A(f"ds_read_b32 v15, {vZ} offset:{L_SYNC+4*word}"); A("s_waitcnt lgkmcnt(0)")
        if mask: A("v_and_b32 v14, 0xffff, v15")
        A(f"v_cmp_gt_i32 vcc, {n}, v{14 if mask else 15}"); A(f"s_cbranch_vccnz L_w{wid[0]}")
    def fill(key,dflt):
        for ch in o.get("f_"+key,dflt) if o.get("fill",0) else "":
            A("v_mov_b32 v14, v14" if ch=="v" else f"s_nop {ch}")
    NW=o.get("nw","dpw")
    def lw(k):
        if k not in NW: A("s_waitcnt lgkmcnt(0)")
    XL=o.get("exp_lw",""); xl=[0]
    def late(k):
        if k in XL:
            xl[0]+=1; A("s_barrier"); A(f"s_cmp_eq_u32 {sw}, 3"); A(f"s_cbranch_scc0 L_xl{xl[0]}"); A("s_sleep 6"); A(f"L_xl{xl[0]}:")
    def bar(k):
        if k not in XL: A("s_barrier")
    def recheck(k,a,b,target):
        if k not in NW: return
        A(f"v_cmp_u_f32 vcc, v{a}, v{b}"); retry(target+"_redo")
        def cold(): lab(target+"_redo"); spin(False); A(f"s_branch {target}{M[0]}")
        COLD.append((M[0],cold))
    def lds_arrive(word):
        A("s_mov_b64 exec, 1"); A(f"ds_add_u32 {vZ}, {vONE} offset:{L_SYNC+4*word}"); A("s_mov_b64 exec, -1")
    def barrier(it,word):
        if it==0: lds_arrive(word); lds_wait(word,4)
        else: lw("q"); A("s_barrier")
    def dump(slot):
        A("s_waitcnt vmcnt(0) lgkmcnt(0)")
        A(f"s_lshl_b32 s48, s2, 3"); A(f"s_add_u32 s48, s48, {slot}"); A("s_lshl_b32 s48, s48, 8"); A(f"s_add_u32 s48, s48, {WS_DBG:#x}")
        A("v_mov_b32 v14, s48")
        for k,r in enumerate([f"s{STAMP0+2*k}" for k in range(16)]+[sspin,"s44",sN,"s3",sdbg]):
            A(f"v_mov_b32 v15, {r}"); A(f"buffer_store_dword v15, v14, {sW}, 0 offen offset:{4*k}")
        if o.get("cal") and slot==sw:
            A("s_mov_b32 s12, 0")
            A("L_cal0:"); A("s_memrealtime s[4:5]"); A("s_waitcnt lgkmcnt(0)")
            A("L_cal1:"); A("s_memrealtime s[6:7]"); A("s_memtime s[8:9]"); A("s_waitcnt lgkmcnt(0)"); A("s_cmp_eq_u32 s6, s4"); A("s_cbranch_scc1 L_cal1")
            A("v_mov_b32 v16, s6"); A("v_mov_b32 v17, s8"); A(f"buffer_store_dwordx2 v[16:17], v14, {sW}, s12 offen offset:96")
            A("s_sleep 9"); A("s_add_u32 s12, s12, 8"); A("s_cmp_lt_u32 s12, 160"); A("s_cbranch_scc1 L_cal0")

    stamp("start")
    if o.get("pad"): A("s_memrealtime s[70:71]")
    if o.get("exp_late"): A("s_and_b32 s3, s2, 7"); A("s_cbranch_scc1 L_nl"); A(f"s_sleep {o['exp_late']}"); A("L_nl:")
    A(f"v_readfirstlane_b32 {sw}, v0"); A(f"v_mov_b32 {vZ}, 0")
    A(f"s_cmpk_eq_u32 {sw}, 320"); A("s_cbranch_scc1 L_init")
    A("L_args:")
    A("s_load_dwordx16 s[4:19], s[0:1], 0"); A("s_load_dwordx8 s[20:27], s[0:1], 64")
    A("s_cmpk_ge_u32 s2, 256"); A("s_cbranch_scc1 L_exit")
    if stamps: A("s_mov_b32 s3, 0"); A(f"s_mov_b32 {sdbg}, 0")
    A(f"s_lshr_b32 {sw}, {sw}, 6"); A("v_and_b32 v0, 63, v0")
    A(f"s_and_b32 {sg}, s2, 7"); A(f"s_lshr_b32 {sc}, s2, 3")
    A(f"s_and_b32 {skq}, {sc}, 3"); A(f"s_lshr_b32 {snb}, {sc}, 2")
    A("s_mov_b32 s31, 0x20000"); A("s_lshl_b32 s38, 5, 20"); A("s_mov_b32 s39, s31"); A("s_mov_b32 s35, s31")
    A(f"v_lshlrev_b32 {vL16}, 4, v0"); A("v_lshrrev_b32 v1, 4, v0")
    A(f"s_cmp_ge_u32 {sw}, 1"); A("s_cbranch_scc1 L_roles")
    A("v_lshlrev_b32 v8, 1, v1"); A("v_and_b32 v6, 7, v0"); A("v_xor_b32 v6, v6, v8"); A("v_lshlrev_b32 v6, 4, v6")
    A("v_lshrrev_b32 v7, 3, v0"); A("v_lshl_add_u32 v9, v7, 13, v6")
    A(f"v_mov_b32 v3, {5-(D+3)//4}")
    for u in range(1,4): A(f"v_add_u32 v{11+u}, {u*(65536-1024):#x}, v9")
    A("v_bfe_u32 v2, v0, 1, 1"); A("v_lshl_add_u32 v2, v1, 1, v2"); A("v_bfe_u32 v10, v0, 2, 2"); A("v_lshl_add_u32 v2, v2, 2, v10"); A("v_and_b32 v10, 1, v0"); A("v_lshl_add_u32 v2, v2, 1, v10"); A("v_lshlrev_b32 v2, 2, v2")
    A(f"s_lshl_b32 {sT1}, {skq}, 8"); A("s_movk_i32 s34, 1024"); A(f"s_lshl_b32 m0, {L_XB>>12}, 12")
    A(f"s_xor_b32 {sB}, {snb}, 1"); A(f"s_lshl3_add_u32 {sB}, {sg}, {sB}"); A(f"s_lshl_b32 {sB}, {sB}, 7")
    if o.get("qrot",1): A(f"s_lshr_b32 s46, {snb}, 1"); A(f"s_add_u32 s46, s46, {skq}"); A("s_and_b32 s46, s46, 3")
    else: A("s_mov_b32 s46, 0")
    A(f"s_lshl2_add_u32 s47, {skq}, s46"); A("s_lshl_b32 s47, s47, 18"); A(f"s_add_u32 {sB}, {sB}, s47"); A("s_lshl_b32 s46, s46, 12")
    A("v_and_b32 v4, 15, v0"); A("v_xor_b32 v4, v4, v8"); A("v_lshlrev_b32 v4, 4, v4"); A("v_lshl_add_u32 v4, v1, 8, v4"); A("v_xor_b32 v11, 0x80, v4")
    IL=o.get("il",(3,4))
    A(f"s_lshl4_add_u32 {sA}, {sg}, 15"); A(f"s_lshl_b32 {sA}, {sA}, 20"); A(f"s_mul_i32 {sD}, {sg}, {IL[1]}")
    n=[0]
    def mid(u):
        h=o.get("half",0)
        if (h==2 and u==2) or (h==1 and u): A(f"s_waitcnt vmcnt({D-4})")
    def step():
        A("v_add_u32 v3, 1, v3")
        if D0:
            sk[0]+=1; A(f"s_waitcnt vmcnt({D0-4})"); A(f"s_cbranch_vccnz L_sk{sk[0]}"); A(f"s_waitcnt vmcnt({D-4})"); A(f"L_sk{sk[0]}:")
        else: A(f"s_waitcnt vmcnt({D-4})")
        A(f"ds_write_b32 {vZ}, v3 offset:{L_SYNC}")
    D0=o.get("D0",0); sk=[0]
    def kv(srd,lds,first,cnt):
        n[0]+=1; lbl=f"L_ld{n[0]}"
        A(f"s_add_u32 {sN}, {sD}, {first}"); A(f"s_add_u32 {sR}, {sD}, {first+cnt}")
        A(f"{lbl}:")
        A(f"s_and_b32 s44, {sN}, 7"); A("s_lshl_b32 s45, s44, 12"); A(f"s_add_u32 m0, s45, {lds:#x}")
        A(f"s_mul_i32 s45, s44, {IL[0]}"); A(f"s_add_u32 s45, s45, {sc}"); A("s_and_b32 s45, s45, 31"); A("s_lshl_b32 s44, s44, 5"); A("s_add_u32 s45, s45, s44"); A("s_lshl_b32 s45, s45, 12")
        A(f"s_add_u32 s45, s45, {sA}")
        for u in range(4): mid(u); A(f"buffer_load_dwordx4 v{11 if u&1 else 4}, {srd}, s45 offen offset:{1024*u} {nt} lds")
        A(f"s_add_u32 {sN}, {sN}, 1"); step()
        if cnt>1: A(f"s_cmp_lg_u32 {sN}, {sR}"); A(f"s_cbranch_scc1 {lbl}")
    def wgroup(srd,base,lds,rs,v,j):
        A(f"s_mov_b32 m0, {lds+4096*j:#x}")
        if j: A(f"s_add_u32 {base}, {base}, {32*rs}")
        for u in range(4): mid(u); A(f"buffer_load_dwordx4 v{v+u}, {srd}, {base} offen offset:{1024*u} {nt} lds")
        step()
    if o.get("lprio"): A(f"s_setprio {o['lprio']}")
    assert D>=20 and IL
    A("s_lshl_b32 s30, 1, 22")
    if not o.get("hfirst",0): A("s_barrier")
    hstamp(4); A("s_waitcnt lgkmcnt(0)")
    A(f"s_mov_b64 s[32:33], {pX}"); A(f"s_mov_b64 s[28:29], {pQ}")
    if o.get("hfirst",0): A("s_barrier")
    A(f"buffer_load_dword v2, {sP}, {sT1} offen lds")
    for gr in range(4):
        A(f"s_xor_b32 m0, s46, {4096*gr:#x}" if gr else "s_mov_b32 m0, s46")
        if gr: A(f"s_xor_b32 {sB}, {sB}, {0x40000*(gr^(gr-1)):#x}")
        for u in range(4): A(f"buffer_load_dwordx4 v{11+u if u else 9}, {sL}, {sB} offen offset:{1024*u} {nt} lds")
    hstamp(1)
    hstamp(6)
    import re as _re
    SZ=dict(Q=4,K=8,V=8,O=4,U=4,W=2)
    SEQ=[(m_[0],int(m_[1:] or SZ[m_[0]])) for m_ in _re.findall(r"[A-Z]\d*",o.get("order","QKO1W1VO1U1O1U1O1U1W1U1"))]
    AT={}; tot=0; done={}
    for ch,cnt in SEQ: tot+=cnt; AT[ch]=tot
    assert tot==30 and all(sum(c_ for x,c_ in SEQ if x==ch)==SZ[ch] for ch in SZ)
    NB=o.get("ffn",(2,4,4,4,2,4,4,4))
    assert sum(NB)==28
    tb=sum(((sum(NB[:g+1])-4)-4*g+8)<<(4*g) for g in range(8)); te=sum((4-NB[g])<<(4*g) for g in range(8))
    def ffn_tab(tab): A(f"s_lshl_b32 s47, {sg}, 2"); A(f"s_lshr_b32 s46, {tab:#x}, s47"); A("s_and_b32 s46, s46, 15")
    def ffn_blk(r): ffn_tab(tb); A("s_add_u32 s46, s46, s47"); A(f"s_add_u32 s46, s46, {r}"); A("s_sub_u32 s46, s46, 8"); A("s_max_i32 s46, s46, 0")
    def ffn_size(r,dst): ffn_tab(te); A(f"s_cmp_lt_u32 {r}, s46"); A(f"s_cselect_b32 {dst}, 0, {512*3584:#x}")
    def load(ch,cnt):
        f=done.get(ch,0); done[ch]=f+cnt
        if ch=="K":
            if f==0: A(f"s_mov_b64 s[28:29], {pK}"); A("s_brev_b32 s30, 16")
            kv(sL,L_K,f,cnt)
        if ch=="V":
            if f==0: A(f"s_mov_b64 s[32:33], {pV}"); A("s_brev_b32 s34, 16")
            kv(sP,L_V,f+o.get("rotV",0),cnt)
        for j in range(f,f+cnt):
            if ch=="O": wgroup("s[12:15]",sB,L_WO,1024,16,j)
            if ch=="U": wgroup("s[16:19]",sT0,L_WU,3584,20,j)
            if ch=="W": wgroup("s[20:23]",sT1,L_W2,1024,16,j)
        if done[ch]==SZ[ch] and ch in "KV": hstamp(7 if ch=="K" else 8)
    def wsetup():
        A(f"s_lshl_b32 {sC}, {snb}, 7"); A("v_lshl_add_u32 v16, v7, 10, v6"); A("v_mul_u32_u24 v20, 3584, v7"); A("v_add_u32 v20, v20, v6")
        for u in range(1,4): A(f"v_add_u32 v{16+u}, {u*7168}, v16"); A(f"v_add_u32 v{20+u}, {u*(8*3584-1024)}, v20")
        A(f"s_lshl_b32 {sB}, {sg}, 2"); A(f"s_add_u32 {sB}, {sB}, {skq}"); A(f"s_lshl_b32 {sB}, {sB}, 17"); A(f"s_add_u32 {sB}, {sB}, {sC}")
        A("s_mov_b32 s14, 0x400000"); A("s_mov_b32 s15, s31")
        A(f"s_bitcmp1_b32 {snb}, 0"); A(f"s_cselect_b64 {p1}, {p3}, {p1}")
        A(f"s_lshr_b32 {sT1}, {snb}, 1"); ffn_blk(sT1); A("s_lshl_b32 s46, s46, 7"); A(f"s_mul_i32 {sT0}, {skq}, {128*3584}"); A(f"s_add_u32 {sT0}, {sT0}, s46")
        ffn_size(sT1,"s18"); A("s_mov_b32 s19, s31")
        ffn_blk(skq); A(f"s_lshl_b32 {sT1}, s46, 16"); A(f"s_add_u32 {sT1}, {sT1}, {sC}")
        ffn_size(skq,"s22"); A("s_mov_b32 s23, s31")
    if D0:
        A(f"s_bitcmp1_b32 {o.get('D0m',1)}, {sg}"); A("s_cselect_b64 vcc, -1, 0"); A(f"s_cselect_b32 s44, {(D+3)//4-(D0+3)//4}, 0"); A("v_add_u32 v3, s44, v3")
    assert SEQ[1][0]=="K"
    load(*SEQ[1])
    A("s_branch L_loader2")
    A("L_init:")
    A("v_lshlrev_b32 v2, 2, v0"); A(f"ds_write_b32 v2, {vZ} offset:{L_SYNC-1280}"); A("s_waitcnt lgkmcnt(0)"); A("s_branch L_args")
    A("L_roles:")
    A(f"s_cmp_eq_u32 {sw}, 1"); A("s_cbranch_scc1 L_helper")
    A(f"s_cmp_ge_u32 {sw}, 6"); A("s_cbranch_scc1 L_probe")
    if o.get("exp_nocomp"): A("s_endpgm")
    A(f"s_sub_u32 {sw}, {sw}, 2")
    A(f"s_cmp_ge_u32 {sc}, 3"); A("s_cbranch_scc1 L_nopf")
    A("s_getpc_b64 s[32:33]"); A("s_and_b32 s32, s32, 0xfffffc00"); A(f"s_mov_b32 s34, L_hotend-{NAME}_kernel+{o.get('pfx',1024)}")
    A(f"s_lshl2_add_u32 {sT0}, {sc}, {sw}"); A(f"s_lshl_b32 {sT0}, {sT0}, 10")
    A(f"buffer_load_dwordx4 v[252:255], {vL16}, {sP}, {sT0} offen offset:1024")
    A("L_nopf:")
    A("s_barrier")
    if o.get("exp_nocomp2"): A("s_endpgm")
    A("s_branch L_setup")
    A("L_probe:")
    if o.get("exp_noprobe"): A("s_endpgm")
    A(f"s_xor_b32 s51, {sw}, {sc}"); A("s_and_b32 s51, s51, 1"); A(f"s_lshl1_add_u32 s48, {sg}, s51"); A("s_lshl_b32 s48, s48, 5"); A(f"s_add_u32 s48, s48, {sc}"); A("s_lshl_b32 s48, s48, 8")
    A("s_barrier"); A("s_waitcnt lgkmcnt(0)")
    ws_srd()
    A("s_memtime s[44:45]"); A(f"s_load_dword s50, s[36:37], s48 offset:{WS_PR:#x}"); A("s_waitcnt lgkmcnt(0)"); A("s_memtime s[46:47]")
    A("s_branch L_probe2")
    A("L_exit:"); A("s_endpgm")
    A("L_helper:")
    if o.get("exp_nohelp")==2: A("s_endpgm")
    A("s_setprio 3")
    for k in range(8,12): A(f"v_mov_b32 v{k}, -1")
    A(f"v_and_b32 v2, {NREP-1}, v0"); A("v_lshlrev_b32 v2, 7, v2")
    A(f"s_lshl_b32 {sA}, {sg}, 12"); A(f"s_add_u32 {sA}, {sA}, {WS_PF:#x}")
    A(f"s_lshl_b32 {sT1}, {sg}, 17"); A(f"s_add_u32 {sT1}, {sT1}, {WS_F:#x}"); A(f"s_lshl_b32 {sC}, {sc}, 11"); A(f"s_add_u32 {sB}, {sT1}, {sC}")
    if o.get("trim",1): A(f"s_cmp_gt_u32 {sc}, 25"); A(f"s_cselect_b32 {sB}, {OOB-WS_SLOW:#x}, {sB}")
    A(f"s_andn2_b32 s44, 1, {snb}"); A("s_lshl_b32 s44, s44, 7"); A(f"s_lshl_b32 s45, {skq}, 2"); A("s_add_u32 s44, s44, s45"); A(f"s_lshr_b32 s45, {snb}, 1"); A("s_add_u32 s44, s44, s45"); A("s_lshl_b32 s44, s44, 4"); A(f"s_add_u32 s44, s44, {F_Q0:#x}")
    A(f"s_lshl_b32 s45, {skq}, 5"); A(f"s_add_u32 s45, s45, {F_ST0-256:#x}")
    A("v_and_b32 v3, 7, v0"); A("v_lshl_add_u32 v3, v3, 8, s44"); A("v_bfe_u32 v4, v0, 3, 1"); A("v_lshl_add_u32 v3, v4, 12, v3")
    A("v_cmp_gt_u32 vcc, 16, v0"); A(f"v_add_u32 v4, s45, {vL16}")
    A(f"s_cmp_eq_u32 {snb}, 0"); A("s_cselect_b32 s50, 18, 16"); A("s_bfm_b64 s[50:51], s50, 0"); A("v_cndmask_b32 v3, v4, v3, vcc")
    A("s_mov_b64 exec, s[50:51]")
    if not o.get("hfirst",0): A("s_barrier")
    hstamp(4)
    A("s_waitcnt lgkmcnt(0)")
    ws_srd()
    if o.get("exp_noq0clr"): A(f"v_mov_b32 v3, {OOB:#x}")
    A(f"buffer_store_dwordx4 v[8:11], v3, {sW}, {sT1} offen")
    A("s_mov_b64 exec, -1")
    for k in range(2):
        if k==1 and o.get("hfirst",0)==2: A("s_barrier")
        A(f"buffer_store_dwordx4 v[8:11], {vL16}, {sW}, {sB} offen offset:{1024*k}")
    if o.get("hfirst",0)==1: A("s_barrier")
    A(f"s_load_dword {stag}, s[36:37], {WS_E:#x}")
    A(f"buffer_load_dword v12, v2, {sW}, {sA} offen sc1 nt")
    if o.get("tat")==-2:
        for k in range(2): A(f"buffer_load_dwordx4 v[{20+4*k}:{23+4*k}], {vL16}, {sW}, {sB} offen offset:{1024*k} sc1 {o['ptnt']}")
    hstamp(6)
    if o.get("exp_nohelp"): A("s_endpgm")
    A("s_branch L_helper2")
    A("L_probe2:")
    A("s_mov_b64 exec, 1"); A("s_waitcnt lgkmcnt(0)")
    A("s_sub_u32 s44, s46, s44"); A("s_min_u32 s44, s44, 0x3fff"); A("s_sub_u32 s45, 0x3fff, s44"); A("s_cmp_eq_u32 s51, 1"); A("s_cselect_b32 s44, s45, s44"); A("s_add_u32 s44, s44, 0x100000")
    A("v_mov_b32 v14, s44"); A(f"ds_add_u32 {vZ}, v14 offset:{L_SYNC+20}"); A("s_waitcnt lgkmcnt(0)")
    if hops:
        A("s_mov_b64 exec, 0"); A(f"s_cmp_eq_u32 {sw}, 6"); A(f"s_cbranch_scc1 H{hops[0][0]}"); A(f"s_branch H{hops[1][0]}")
    else: A("s_endpgm")
    A("L_loader2:")
    ws_=False
    for x in SEQ[2:]:
        if x[0] in "OUW" and not ws_: hop(); wsetup(); ws_=True
        if o.get("hold") and 4+sum(done.values())==30-o["hold"]:
            for k in range(1,3):
                A(f"v_add_u32 v24, {k}, v3"); A(f"s_waitcnt vmcnt({D-4-4*k})"); A(f"ds_write_b32 {vZ}, v24 offset:{L_SYNC}")
                if 4+sum(done.values())-(D+3)//4+1+k>=AT["V"]: break
            lds_wait(3,4)
        load(*x)
    hstamp(2)
    A("s_mov_b64 exec, 1")
    if D0: A("s_cbranch_vccz L_dr")
    for k in range((max(D,D0)+3)//4-2,-1,-1):
        if D0 and k==(D+3)//4-2: A("L_dr:")
        A("v_add_u32 v3, 1, v3"); A(f"s_waitcnt vmcnt({4*k})"); A(f"ds_write_b32 {vZ}, v3 offset:{L_SYNC}")
    A("s_mov_b64 exec, -1")
    hstamp(3)
    A("s_waitcnt lgkmcnt(0)")
    A("s_branch L_ldump" if stamps and not o.get("cyc") and not o.get("nohd") else "s_endpgm")
    A("L_helper2:"); hop()
    A(f"s_getreg_b32 {sD}, hwreg(HW_REG_XCC_ID)"); A(f"s_and_b32 {sD}, {sD}, 7")
    if o.get("force_slow"): A(f"s_and_b32 {sD}, {sc}, 1")
    A(f"s_add_u32 s40, s36, {sA}"); A("s_addc_u32 s41, s37, 0")
    A(f"s_lshl_b32 {sC}, {sc}, 2"); A(f"s_add_u32 {sC}, {sC}, {sA}")
    A(f"s_lshl_b32 {sN}, {sg}, 12"); A(f"s_add_u32 {sN}, {sN}, {WS_FL:#x}"); A(f"s_lshl_b32 {sR}, {sc}, 7"); A(f"s_add_u32 {sR}, {sR}, {sN}")
    A(f"s_mov_b32 {sspin}, {SPIN}"); A(f"v_mov_b32 {vONE}, 1")
    A(f"s_waitcnt vmcnt({3 if o.get('tat')==-2 else 1})")
    A(f"ds_write_b32 {vZ}, {vONE} offset:{L_SYNC+24}")
    if o.get("tat")==-3:
        for k in range(2): A(f"buffer_load_dwordx4 v[{20+4*k}:{23+4*k}], {vL16}, {sW}, {sB} offen offset:{1024*k} sc1 {o['ptnt']}")
    A("s_mov_b32 s48, 0x200000")
    lds_wait(5,"s48")
    A("v_readfirstlane_b32 s48, v15"); A(f"s_cmp_gt_u32 s48, {0x200000+0x3fff-80:#x}"); A("s_cselect_b32 s49, 8, 0"); A(f"s_cmp_gt_u32 s48, {0x200000+0x3fff+80:#x}"); A("s_cselect_b32 s49, 16, s49")
    if stamps: A(f"s_sub_u32 {sdbg}, s48, {0x200000+0x3fff-10000:#x}")
    A(f"s_add_u32 {stag}, {stag}, {TAGK:#x}"); A(f"s_and_b32 {stag}, {stag}, 0xffffffe0")
    A(f"s_or_b32 s42, {stag}, {sD}"); A("s_mov_b32 s43, s42"); A("s_or_b32 s49, s49, s42"); A("v_mov_b32 v13, s49")
    A(f"s_bfm_b64 exec, {NREP}, 0")
    hstamp(1)
    A(f"buffer_store_dword v13, v2, {sW}, {sC} offen")
    A("s_mov_b64 exec, -1")
    def touch():
        A(f"s_mov_b32 s44, {sB}")
        if o.get("q0t",0):
            A(f"s_lshl_b32 s45, {sc}, 11"); A(f"s_add_u32 s45, s45, {sT1}"); A(f"s_add_u32 s45, s45, {F_Q0-26*2048:#x}"); A(f"s_cmp_gt_u32 {sc}, 25"); A("s_cselect_b32 s44, s45, s44")
        for k in range(2): A(f"buffer_load_dwordx4 v[{20+4*k}:{23+4*k}], {vL16}, {sW}, s44 offen offset:{1024*k} sc1 {o['ptnt']}")
    tat=o.get("tat",0) if not o.get("exp_notouch") else -1
    if tat==0: touch()
    A(f"s_mov_b32 s48, {o.get('p0',10)}"); A(f"s_mov_b32 {sC}, {NREP}")
    A("s_waitcnt vmcnt(0)" if tat else "s_waitcnt vmcnt(2)")
    A("L_hpoll:")
    lds_wait(0,"s48")
    A("v_readfirstlane_b32 s48, v15")
    A("s_load_dwordx16 s[4:19], s[40:41], 0"); A("s_load_dwordx16 s[20:35], s[40:41], 64")
    A("s_waitcnt lgkmcnt(0)")
    A("s_xor_b64 s[44:45], s[4:5], s[42:43]")
    for k in range(1,16): A(f"s_xor_b64 s[46:47], s[{4+2*k}:{5+2*k}], s[42:43]"); A("s_or_b64 s[44:45], s[44:45], s[46:47]")
    A("s_or_b32 s44, s44, s45"); A("s_andn2_b32 s44, s44, 24")
    A("s_cbranch_scc0 L_hfast")
    if stamps: A(f"s_sub_u32 {sspin}, {sspin}, 1")
    A("s_add_u32 s40, s40, 128"); A("s_addc_u32 s41, s41, 0")
    A(f"s_add_u32 s48, s48, {o.get('pstep',1)}"); A("s_min_u32 s48, s48, 20")
    A(f"s_sub_u32 {sC}, {sC}, 1"); A(f"s_cmp_lg_u32 {sC}, 0"); A("s_cbranch_scc1 L_hpoll")
    A("s_branch L_hvec")
    A("L_hfast:")
    A("s_mov_b64 exec, 1"); A("v_mov_b32 v13, 0x10001"); A(f"ds_add_u32 {vZ}, v13 offset:{L_SYNC+4}")
    hstamp(2)
    for k in range(5,36): A(f"s_add_u32 s4, s4, s{k}")
    A("s_lshl_b32 s5, s42, 5"); A("s_sub_u32 s4, s4, s5"); A("s_cmp_gt_u32 s4, 256"); A("s_cselect_b32 s49, 16, 0")
    A("L_hok:")
    A("s_and_b32 s49, s49, 16"); A("s_lshl_b32 s49, s49, 9"); A("v_mov_b32 v13, s49"); A(f"ds_write_b32 {vZ}, v13 offset:{L_SYNC+16}")
    A("s_mov_b64 exec, -1")
    A(f"s_lshl_b32 s4, {sg}, 14"); A(f"s_lshl_b32 s5, {skq}, 11"); A("s_add_u32 s4, s4, s5"); A(f"s_lshl_b32 s5, {snb}, 8"); A("s_add_u32 s4, s4, s5")
    A("v_and_b32 v3, 15, v0"); A("v_lshlrev_b32 v3, 4, v3"); A("v_and_b32 v7, 1, v1"); A("v_lshl_add_u32 v3, v7, 17, v3"); A("v_lshrrev_b32 v7, 5, v0"); A("v_lshl_add_u32 v3, v7, 13, v3")
    A(f"s_lshr_b32 s6, {snb}, 1"); A("s_lshl_b32 s6, s6, 14"); A(f"s_and_b32 s7, {snb}, 1"); A("s_lshl_b32 s7, s7, 12"); A("s_add_u32 s6, s6, s7")
    A(f"s_lshl_b32 s7, {sg}, 2"); A(f"s_add_u32 s7, s7, {skq}"); A("s_lshl_b32 s7, s7, 6"); A("s_add_u32 s6, s6, s7"); A(f"s_add_u32 s6, s6, {WS_S1:#x}")
    A("v_and_b32 v4, 3, v0"); A("v_lshlrev_b32 v4, 4, v4"); A("v_bfe_u32 v7, v0, 2, 1"); A("v_lshl_add_u32 v4, v7, 11, v4"); A("v_bfe_u32 v7, v0, 3, 1"); A("v_lshl_add_u32 v4, v7, 13, v4"); A("v_lshl_add_u32 v4, v1, 16, v4")
    if tat>0:
        lds_wait(0,tat); touch()
    lds_wait(0,o.get("clrat",23))
    A(f"buffer_store_dwordx4 v[8:11], v3, {sW}, s4 offen sc1")
    A("s_bfm_b64 exec, 32, 0")
    A(f"buffer_store_dwordx4 v[8:11], v4, {sW}, s6 offen sc1")
    A("L_hdone:")
    A("s_waitcnt vmcnt(0) lgkmcnt(0)")
    hstamp(3)
    A("s_branch L_hdump" if stamps and not o.get("cyc") and not o.get("nohd") and not o.get("nohd2") else "s_endpgm")

    A("L_setup:")
    A("v_and_b32 v2, 3, v0"); A("v_bfe_u32 v3, v0, 2, 2")
    A("v_and_b32 v10, 1, v1"); A("v_lshl_add_u32 v10, v2, 1, v10"); A("v_lshl_add_u32 v10, v10, 2, v3"); A("v_bfe_u32 v9, v0, 3, 2")
    A(f"s_lshl_b32 {sT0}, {skq}, 2"); A(f"s_add_u32 {sD}, {sT0}, {sw}")
    A(f"s_lshl_b32 {sT0}, {sD}, 6"); A(f"v_lshl_add_u32 {vOUT}, v10, 1, {sT0}")
    A("s_mov_b32 s30, 1024")
    A("s_waitcnt lgkmcnt(0)")
    stamp("k.arg")
    ws_srd()
    A(f"s_mov_b64 s[28:29], {pOUT}")
    A("s_mov_b32 s68, 0"); A("s_mov_b32 s69, -1"); A(f"s_mov_b32 {sspin}, {SPIN}")
    A(f"v_mov_b32 {vONE}, 1"); A(f"v_mov_b32 {vNAN}, -1")
    A("v_and_b32 v12, 15, v0"); A(f"v_mov_b32 v13, {OOB:#x}")
    A("v_cmp_gt_u32 s[62:63], 32, v0")
    A("v_and_b32 v14, 1, v0"); A("v_lshlrev_b32 v14, 4, v14"); A("v_mov_b32 v15, 0xffff"); A("v_lshlrev_b32 v14, v14, v15")
    A("v_lshrrev_b32 v15, 1, v12")
    for k in range(8): A(f"v_cmp_eq_u32 s[{4+2*k}:{5+2*k}], {k}, v15")
    for k in range(8): A(f"v_cndmask_b32 v{MASK+k}, 0, v14, s[{4+2*k}:{5+2*k}]")
    A("v_lshrrev_b32 v15, 3, v12"); A("v_sub_u32 v15, v1, v15")
    for u in range(2): A(f"v_cmp_eq_u32 s[{4+2*u}:{5+2*u}], {2*u}, v15")
    for k in range(4):
        A(f"v_mov_b32 v{ONES+k}, 0x3f803f80"); A(f"v_or_b32 v{SEL+k}, v{MASK+k}, v{MASK+4+k}"); A(f"v_and_b32 v{SEL+k}, v{ONES+k}, v{SEL+k}")
    for u in range(2):
        for k in range(4): A(f"v_cndmask_b32 v{SELU+4*u+k}, 0, v{SEL+k}, s[{4+2*u}:{5+2*u}]")
    A("v_and_b32 v14, 1, v0"); A("v_bfe_u32 v15, v0, 2, 1"); A("v_lshl_add_u32 v15, v15, 1, v14"); A("v_mov_b32 v14, 1.0")
    for k in range(4): A(f"v_cmp_eq_u32 s[{4+2*k}:{5+2*k}], {k}, v15")
    for k in range(4): A(f"v_cndmask_b32 v{SELT+k}, 0, v14, s[{4+2*k}:{5+2*k}]")
    A("v_lshrrev_b32 v14, 5, v0"); A("v_lshlrev_b32 v14, 14, v14"); A("v_lshl_add_u32 v14, v9, 11, v14"); A("v_and_b32 v15, 7, v0"); A("v_lshl_add_u32 v14, v15, 4, v14")
    A(f"s_lshl_b32 s48, {sD}, 7"); A(f"s_and_b32 s49, {sg}, 1"); A("s_lshl_b32 s49, s49, 17"); A("s_add_u32 s48, s48, s49"); A(f"v_add_u32 {vSG0}, s48, v14")
    A(f"s_lshl_b32 s48, {sg}, 14"); A(f"s_lshl_b32 s49, {skq}, 11"); A("s_add_u32 s48, s48, s49")
    A(f"s_lshl_b32 s49, {snb}, 8"); A("s_add_u32 s48, s48, s49"); A(f"s_lshl_b32 s49, {sw}, 6"); A("s_add_u32 s48, s48, s49")
    A(f"v_lshl_add_u32 v14, v12, 2, s48"); A("v_and_b32 v7, 1, v1"); A("v_lshrrev_b32 v8, 5, v0"); A("v_lshl_add_u32 v14, v7, 17, v14"); A(f"v_lshl_add_u32 {vSP0}, v8, 13, v14")
    A("v_bfe_u32 v14, v0, 2, 1"); A("v_lshlrev_b32 v14, 3, v14"); A("v_lshl_add_u32 v14, v2, 4, v14"); A("v_lshl_add_u32 v14, v9, 1, v14"); A(f"v_add_u32 {vXS}, s49, v14")
    hop()
    A(f"s_and_b32 s48, {sg}, 1"); A("s_lshl_b32 s48, s48, 2"); A(f"s_add_u32 s48, s48, {skq}"); A("s_lshl_b32 s48, s48, 3"); A(f"s_add_u32 s48, s48, {sw}"); A("s_lshl_b32 s48, s48, 11"); A(f"v_add_u32 {vSG}, s48, {vL16}")
    A(f"s_lshr_b32 s48, {snb}, 1"); A("s_lshl_b32 s48, s48, 14"); A(f"s_and_b32 s49, {snb}, 1"); A("s_lshl_b32 s49, s49, 12"); A("s_add_u32 s48, s48, s49")
    A(f"s_lshr_b32 s49, {sw}, 1"); A("s_lshl_b32 s49, s49, 11"); A("s_add_u32 s48, s48, s49"); A(f"s_and_b32 s49, {sw}, 1"); A("s_lshl_b32 s49, s49, 5"); A("s_add_u32 s48, s48, s49")
    A(f"s_lshl_b32 s49, {sg}, 2"); A(f"s_add_u32 s49, s49, {skq}"); A("s_lshl_b32 s49, s49, 6"); A("s_add_u32 s48, s48, s49")
    A("v_lshl_add_u32 v14, v12, 1, s48"); A("v_lshl_add_u32 v14, v7, 16, v14"); A(f"v_lshl_add_u32 {vSP}, v8, 13, v14")
    A(f"s_lshl_b32 s48, {sw}, 10"); A(f"v_add_u32 {vQG}, s48, {vL16}")
    A(f"s_load_dword {stag}, s[36:37], {WS_E:#x}")
    A(f"s_and_b32 s50, {snb}, 1"); A("s_xor_b32 s48, s50, 1"); A("s_lshl_b32 s48, s48, 2"); A(f"s_add_u32 s48, s48, {sw}"); A("s_lshl_b32 s48, s48, 9")
    A(f"s_lshl_b32 s49, {skq}, 2"); A(f"s_lshr_b32 s51, {snb}, 1"); A("s_add_u32 s49, s49, s51"); A("s_lshl_b32 s49, s49, 4"); A("s_add_u32 s48, s48, s49"); A(f"s_add_u32 s48, s48, {F_Q0:#x}")
    A("v_lshrrev_b32 v14, 3, v12"); A("v_lshlrev_b32 v14, 8, v14"); A("v_and_b32 v15, 7, v0"); A("v_lshl_add_u32 v14, v15, 1, v14"); A("v_lshl_add_u32 v14, v1, 12, v14"); A("v_add_u32 v14, s48, v14")
    A(f"v_cndmask_b32 {vQP}, v13, v14, s[62:63]")
    A("s_lshl_b32 s48, s51, 10"); A(f"s_lshl_b32 s49, {sw}, 8"); A("s_add_u32 s48, s48, s49"); A("s_lshl_b32 s49, s50, 3"); A("s_add_u32 s48, s48, s49"); A(f"s_lshl_b32 s49, {skq}, 1"); A("s_add_u32 s48, s48, s49"); A(f"s_add_u32 s48, s48, {F_U:#x}")
    A("v_lshl_add_u32 v14, v12, 4, s48"); A("v_lshl_add_u32 v14, v1, 12, v14"); A(f"v_cndmask_b32 {vUP}, v13, v14, s[62:63]")
    A(f"s_lshl_b32 s48, {skq}, 10"); A(f"s_add_u32 s48, s48, {F_U:#x}"); A(f"v_add_u32 {vUG}, s48, {vL16}")
    A("v_lshlrev_b32 v14, 3, v12"); A(f"v_add_u32 {vST}, {F_ST:#x}, v14")
    A(f"s_lshl_b32 s49, {skq}, 8"); A(f"s_add_u32 s49, s49, {F_LAM:#x}"); A("v_lshrrev_b32 v15, 5, v0"); A("v_lshl_add_u32 v14, v15, 7, v14"); A(f"v_add_u32 {vLG}, s49, v14")
    A(f"s_lshl_b32 s48, {sD}, 3"); A(f"s_add_u32 s48, s48, {F_ST:#x}"); pass
    A("v_and_b32 v15, 0x2f, v0"); A("v_cmp_eq_u32 vcc, 0, v15"); A("v_lshl_add_u32 v14, v1, 2, s48"); A(f"v_cndmask_b32 {vSTP}, v13, v14, vcc")
    A(f"v_cmp_eq_u32 vcc, {sw}, v0")
    A(f"s_lshl_b32 s48, {sw}, 11"); A(f"s_lshl_b32 s49, {sc}, 6"); A("s_add_u32 s48, s48, s49"); A("v_and_b32 v14, 60, v0"); A("v_add_u32 v14, s48, v14"); A(f"v_lshl_add_u32 {vAP}, v2, 13, v14")
    A(f"s_lshl_b32 s48, {sw}, 1"); A("s_add_u32 s48, s48, s50"); A("s_lshl_b32 s48, s48, 2"); A(f"s_add_u32 s48, s48, {skq}"); A("s_lshl_b32 s48, s48, 2"); A("s_add_u32 s48, s48, s51"); A("s_lshl_b32 s48, s48, 3"); A(f"s_add_u32 s48, s48, {F_LAM:#x}")
    A("v_mov_b32 v14, s48"); A(f"v_cndmask_b32 {vLP}, v13, v14, vcc")
    A(f"s_lshl_b32 s48, {sD}, 11"); A(f"v_add_u32 {vAG}, s48, {vL16}")
    A(f"s_lshl_b32 s49, {sw}, 6"); A("v_lshrrev_b32 v9, 2, v0")
    hop()
    A("v_and_b32 v14, 1, v2"); A("v_and_b32 v15, 1, v1"); A("v_lshl_add_u32 v14, v14, 1, v15"); A("v_lshlrev_b32 v14, 4, v14"); A("v_lshrrev_b32 v15, 1, v2"); A("v_lshl_add_u32 v14, v15, 3, v14"); A("v_lshl_add_u32 v14, v3, 1, v14")
    A(f"v_add_u32 {vXW}, s49, v14")
    A("v_cmp_eq_u32 vcc, 1, v3")
    A(f"v_lshl_add_u32 {vOR}, v1, 4, s49")
    A("v_xor_b32 v14, 18, v1"); A("v_lshlrev_b32 v14, 4, v14"); A(f"v_cndmask_b32 {vXR}, {vOR}, v14, vcc")
    CH=o.get("chain","")
    for k in range(3):
        if "Q" in CH: A(f"v_xor_b32 {vXK[k]}, {64*(k+1)}, {vXR}")
        if "O" in CH: A(f"v_xor_b32 {vOK[k]}, {64*(k+1)}, {vOR}")
    A("v_lshlrev_b32 v15, 6, v2"); A(f"v_xor_b32 v15, v15, {vOR}")
    if "Q" not in CH: A(f"v_cndmask_b32 {vXR}, v15, v14, vcc")
    if "O" not in CH: A(f"v_mov_b32 {vOR}, v15")
    A("v_lshlrev_b32 v14, 6, v1"); A("v_lshl_add_u32 v14, v2, 4, v14"); A(f"v_add_u32 v14, {L_PB}, v14")
    A(f"v_mov_b32 {vPF0}, v14"); A(f"v_xor_b32 {vPF1}, 0x80, v14")
    A(f"s_lshl_b32 s48, {sw}, 8"); A("v_lshl_add_u32 v15, v3, 2, v14"); A("v_add_u32 v15, s48, v15"); A("s_and_b32 s48, s49, 0x80"); A(f"v_xor_b32 {vPW}, s48, v15")
    A("v_lshl_add_u32 v14, v3, 8, v14"); A("v_and_b32 v15, 8, v0"); A("v_lshlrev_b32 v15, 4, v15"); A(f"v_xor_b32 {vPR}, v14, v15")
    for k in range(4): A(f"v_cmp_eq_u32 s[{4+2*k}:{5+2*k}], {k}, v3")
    A(f"v_cndmask_b32 {vAP4}, v13, {vAP}, s[4:5]")
    A(f"v_mov_b32 v15, {L_ZERO}")
    for k in range(4): A(f"v_cndmask_b32 {vPB[k]}, v15, {vPR}, s[{4+2*k}:{5+2*k}]")
    A(f"ds_write_b32 v15, {vZ}"); A(f"ds_write_b32 v15, {vZ} offset:4"); A(f"ds_write_b32 v15, {vZ} offset:8"); A(f"ds_write_b32 v15, {vZ} offset:12")
    A("v_lshrrev_b32 v14, 5, v0"); A("v_lshlrev_b32 v14, 6, v14"); A("v_lshl_add_u32 v14, v3, 4, v14"); A("v_and_b32 v15, 1, v1"); A("v_lshl_add_u32 v14, v15, 3, v14"); A("v_lshl_add_u32 v14, v2, 1, v14")
    A("s_mov_b32 s48, 0"); A(f"v_add_u32 {vHW}, s48, v14")
    A(f"v_lshlrev_b32 {vHR}, 4, v1")
    if "D" not in CH: A("v_and_b32 v14, 1, v0"); A(f"v_lshl_add_u32 {vHR}, v14, 6, {vHR}")
    A("v_bfe_u32 v15, v0, 3, 2"); A(f"v_xor_b32 v15, {sw}, v15"); A("v_lshlrev_b32 v15, 5, v15"); A("v_lshl_add_u32 v14, v9, 7, v15"); A("v_lshl_add_u32 v14, v2, 3, v14")
    A(f"s_lshl_b32 s48, {sw}, 12"); A(f"v_add_u32 {vWR}, s48, v14")
    A("v_lshlrev_b32 v14, 2, v0"); A(f"ds_write_b32 v14, v{ONES} offset:{L_ONES}"); A(f"ds_write_b32 v14, v{ONES} offset:{L_XU+256}")
    A(f"s_lshl_b32 s48, {sw}, 10"); A("v_add_u32 v14, s48, v14")
    for k in range(4): A(f"ds_write_b32 v14, {vNAN} offset:{0xF000+256*k}")
    A("v_and_b32 v14, 7, v0")
    A("v_lshlrev_b32 v14, 1, v14"); A("v_xor_b32 v14, v14, v1"); A("v_lshlrev_b32 v14, 4, v14"); A("v_lshl_add_u32 v14, v12, 8, v14")
    A(f"s_lshl_b32 s48, {sw}, 13"); A(f"s_add_u32 s48, s48, {L_K:#x}"); A("v_add_u32 v7, s48, v14"); A("v_xor_b32 v7, s49, v7")
    A(f"s_lshl_b32 s48, {sw}, 1"); A("v_lshrrev_b32 v14, 1, v2"); A("v_add_u32 v14, s48, v14"); A("v_and_b32 v15, 7, v9"); A("v_xor_b32 v14, v14, v15"); A("v_lshlrev_b32 v14, 5, v14")
    A("v_lshl_add_u32 v14, v9, 8, v14"); A("v_and_b32 v15, 1, v0"); A("v_lshl_add_u32 v14, v15, 4, v14"); A(f"v_add_u32 v8, {L_V:#x}, v14")
    A("s_waitcnt vmcnt(0) lgkmcnt(0)")
    A(f"v_cndmask_b32 {vOUT}, v13, {vOUT}, s[62:63]")
    A(f"s_add_u32 {stag}, {stag}, {TAGK:#x}"); A(f"s_and_b32 {sTG}, {stag}, 0x1fff"); A(f"s_or_b32 {sTG}, {sTG}, 0x2000"); A(f"s_lshl_b32 {sTF}, {sTG}, 16")
    A(f"s_lshl_b32 s48, {sg}, 17"); A(f"s_add_u32 s48, s48, {WS_F:#x}"); A("s_add_u32 s40, s36, s48"); A("s_addc_u32 s41, s37, 0"); A(f"s_mov_b32 s42, {FSZ:#x}"); A("s_mov_b32 s43, 0x20000")
    A(f"s_mov_b32 {sA}, 0x2000"); A(f"s_mov_b32 {sB}, {F_Q0:#x}"); A(f"s_mov_b32 {sC}, {F_Q0+0x1000:#x}"); A(f"s_mov_b32 {sT0}, {F_ST0-F_ST:#x}")
    A(f"v_add_u32 {vQR[0]}, {L_QB:#x}, {vQG}")
    for k in range(1,4): A(f"v_xor_b32 {vQR[k]}, {1024*k}, {vQR[0]}")
    A("s_mov_b32 s46, 0x3b000000"); A("s_mov_b32 s47, s46")
    A(f"s_mov_b32 s10, {o.get('smB',0x42000000):#x}")
    A("s_mov_b32 s12, 0x000f000f"); A("s_mov_b32 s13, s12")
    for k in range(1,4): A(f"s_lshl_b64 s[{12+2*k}:{13+2*k}], s[12:13], {4*k}")
    def wfrags(dst,lds):
        for s in range(4):
            if s: A(f"v_xor_b32 v15, {4096*s}, {vWR}")
            for hh in range(2): A(f"ds_read_b64_tr_b16 {d(dst+4*s+2*hh)}, {'v15' if s else vWR} offset:{lds+2048*hh}")
    if o.get("cprio"): A(f"s_setprio {o['cprio']}")
    stamp("setup")
    if o.get("exp_ldone"): lds_wait(0,o["exp_ldone"]); stamp("ldone")
    lds_wait(0,4)
    stamp("wq")
    A(f"ds_read_u16_d16_hi {vCAR}, {vXS} offset:{L_XB}")
    wfrags(WQ,L_WQ)
    hop()
    lds_wait(6,1)
    A(f"v_and_b32 {vCAR}, 0xffff0000, {vCAR}")

    WARM=[]; COLD=[]
    def emit(blocks):
        for m_,f in blocks: M[0]=m_; f()
        M[0]=""
    G=T+24
    def xstat():
        return [f"v_mul_f32 v{G}, {vCAR}, {vCAR}", f"v_mov_b32 v{G+1}, {vCAR}", f"v_permlane16_swap_b32 v{G}, v{G+1}", f"v_add_f32 v{G}, v{G}, v{G+1}"]+\
               [f"v_add_f32_dpp v{G}, v{G}, v{G} "+dpp(c) for c in R16]
    def gemv(W,kind,it,scale=None,xs=None):
        X=T; Dr=T+4
        A(f"ds_read_b128 {q(X)}, {vOR if kind=='O' else vXR} offset:{dict(O=L_OB1 if it else L_OB,Q=L_XB,U=L_XU)[kind]}")
        if kind!="O":
            first=(kind,it)==("Q",0)
            nsh=o.get("exp_fast") if len(xs)==10 else 99
            for k,x in enumerate(xs[:nsh]):
                A(x)
                if k==(1 if len(xs)==10 else 0): A(f"s_cmp_eq_u32 {snb}, {0 if first else sw}"); A(f"s_cselect_b32 s48, {sT0 if first else 0}, {OOB:#x}")
            sst=lambda: fstore("buffer_store_dword",f"v{G}",vSTP,"s48",0x80*(2*it+(kind=='U')))
            if nsh==99: sst()
        yield
        A("s_waitcnt lgkmcnt(0)")
        for s in range(4):
            A(f"{MF} {q(Dr+4*s)}, {q(X)}, {q(W+4*s)}, 0")
            if kind!="O" and nsh<99:
                if nsh+s<8: A(xs[nsh+s])
                if nsh+s==7 or (nsh>=8 and s==0): sst()
                if s==3: A(xs[8]); A(xs[9])
        yield
        A(f"v_add_f32 v{Dr}, v{Dr}, v{Dr+5}"); A(f"v_add_f32 v{Dr}, v{Dr}, v{Dr+10}")
        if scale: A(f"v_mul_f32 v{Dr}, v{Dr}, {scale}")
        A(f"v_fmac_f32 v{Dr}, v{Dr+15}, {scale}" if scale else f"v_add_f32 v{Dr}, v{Dr}, v{Dr+15}")
        if kind!="O":
            A(f"v_cvt_pk_bf16_f32 v{Dr}, v{Dr}, v{Dr}")
            fstore("buffer_store_short",f"v{Dr}",vQP if kind=="Q" else vUP,0)
        yield
    def run(g):
        for _ in g: pass
    def wait(f):
        if int(f): A(f"s_sleep {int(f)}")
        if f!=int(f): A(f"s_nop {int((f-int(f))*16)-1}")
    def fwait(k):
        f=o.get("fwait"+k,o.get("fwait"+k[0],o["fwait"]))
        if f=="ack": A("s_waitcnt vmcnt(0)")
        else: wait(f)
    def spublish(reg,hop_):
        if hop_==0:
            A(f"v_cvt_pk_bf16_f32 v{reg}, {sTF}, v{reg}")
            A(f"buffer_store_dword v{reg}, {vSP0}, {sW}, 0 offen sc1")
        else:
            A(f"v_cvt_pk_bf16_f32 v{reg}, v{reg}, v{reg}")
            A(f"buffer_store_short v{reg}, {vSP}, {sW}, {sR} offen sc1")
    X0=T+28
    def s0load(t): A(f"buffer_load_dwordx4 {q(X0+4*t)}, {vSG0}, {sW}, {(sG1,sG2,sG3,sG0)[t]} offen sc1")
    def sack(hop_,extra=0):
        sw_=o.get(f"swait{hop_}",o["swait"])
        if sw_=="far": A(f"s_waitcnt vmcnt({extra})")
        else: wait(sw_)
    def sg_head(lbl,hop_):
        X=T; Dr=T+16; U=T+20; C=T+21
        stamp(lbl+".ack")
        if hop_==0:
            X=X0; m0_=o.get("mask0",0)
            if o.get("split0",0):
                s0load(3); A(f"s_branch {lbl}_in{M[0]}")
            elif m0_: A("s_mov_b64 vcc, -1")
            if o.get("back0"): A(f"s_branch {lbl}_f{M[0]}")
            lab(lbl); stamp(lbl+".try")
            if o.get("back0"): wait(o["back0"]); lab(lbl+"_f")
            if m0_: A("s_mov_b64 exec, vcc")
            for t in range(4): s0load(t)
            if m0_: A("s_mov_b64 exec, -1")
            spin()
            lab(lbl+"_in")
            for t in range(4):
                A(f"s_waitcnt vmcnt({3-t})")
                if t==3: stamp(lbl+".got")
                A(f"{MF} {q(Dr)}, {q(SELT)}, {q(X+4*t)}, {q(Dr) if t else 0}")
                A(f"v_bitop3_b32 v{C+1}, v{X+4*t}, v{X+4*t+1}, {sTG} bitop3:0x7e")
                A(f"v_bitop3_b32 v{C+2}, v{X+4*t+2}, v{X+4*t+3}, {sTG} bitop3:0x7e")
                A(f"v_or3_b32 v{C}, v{C+1}, v{C+2}, {'v%d'%C if t else 0}")
            A(f"v_cmp_ne_u16 vcc, 0, v{C}")
            mark(); retry(lbl)
            A(f"v_add_f32_dpp v{U}, v{Dr}, v{Dr} "+dpp("row_ror:8",0x3))
            A(f"v_add_f32_dpp v{U}, v{Dr+1}, v{Dr+1} "+dpp("row_ror:8",0xc))
        else:
            X=T+28
            def loads():
                A(f"buffer_load_dwordx4 {q(X)}, {vSG}, {sW}, {sN} offen sc1")
                A(f"buffer_load_dwordx4 {q(X+4)}, {vSG}, {sW}, {sN} offen offset:1024 sc1")
            pre=o.get(f"spipe{hop_}",o.get("spipe",()))
            for g_ in pre: loads(); A(f"s_sleep {g_}")
            bk=o.get(f"back{hop_}")
            if bk: A(f"s_branch {lbl}_f{M[0]}")
            lab(lbl); stamp(lbl+".try")
            if bk: wait(bk); lab(lbl+"_f")
            loads()
            spin()
            A(f"s_waitcnt vmcnt({1+2*len(pre)})")
            A(f"{MF} {q(Dr)}, {q(SEL)}, {q(X)}, 0")
            A(f"s_waitcnt vmcnt({2*len(pre)})")
            stamp(lbl+".got")
            A(f"{MF} {q(Dr)}, {q(SEL)}, {q(X+4)}, {q(Dr)}")
            if hop_ not in o.get("noearly",()): A(f"v_max_u32 v{C}, v{X}, v{X+4}"); A(f"v_cmp_eq_u32 vcc, -1, v{C}"); mark(); retry(lbl)
            rs4(U,C,C+1,Dr)
        if not o.get("r1"): A(f"v_cvt_pk_bf16_f32 v{U}, 0, v{U}")
        A(f"v_add_f32 v{U}, v{U}, {vCAR}")
        A(f"v_cvt_pk_bf16_f32 v{U}, 0, v{U}")
        if hop_<3: A(f"ds_write_b16_d16_hi {vXW if hop_ else vXS}, v{U} offset:{L_XB if hop_==1 else L_XU}")
        if hop_==3: A(f"buffer_store_short_d16_hi v{U}, {vOUT}, {sL}, 0 offen")
        if o.get("exp_fast") and hop_<3:
            A("s_barrier")
            return [x.replace(vCAR,f"v{U}") for x in xstat()]+[f"v_mov_b32 {vCAR}, v{U}",f"s_add_u32 {sN}, {sN}, {0x40000 if hop_ else WS_S1:#x}"]
        if hop_: A(f"v_cmp_u_f32 vcc, v{U}, v{U}")
        if hop_==3: retry(lbl); return
        xs=[x.replace(vCAR,f"v{U}") for x in xstat()]
        for x in xs[:3]: A(x)
        if hop_: retry(lbl)
        stamp(lbl+".ok")
        A(xs[3]); A(f"v_mov_b32 {vCAR}, v{U}"); A(f"s_add_u32 {sN}, {sN}, {0x40000 if hop_ else WS_S1:#x}")
        npre=o.get("xpre",5)
        for x in xs[4:npre]: A(x)
        lw("s"); A("s_barrier")
        stamp(lbl+".bar")
        return xs[npre:]
    def stats_ops(ST,SI,rstd):
        L=[]
        for k,c in enumerate(R16):
            for e in range(2): L.append(f"v_add_f32_dpp v{ST+e}, v{(ST if k else SI)+e}, v{(ST if k else SI)+e} "+dpp(c))
        L.append(f"v_pk_mul_f32 {d(ST)}, {d(ST)}, s[46:47]")
        L.append(f"v_fma_f32 v{ST}, -v{ST+1}, v{ST+1}, v{ST}")
        L.append(f"v_add_f32 v{ST}, |v{ST}|, s45")
        L.append(f"v_rsq_f32 v{rstd}, v{ST}")
        return L
    def rs8(u0,u1,t,Dr):
        for v in range(4): A(f"v_add_f32_dpp v{t+v}, v{Dr+v}, v{Dr+v} "+dpp("row_ror:8",0x3))
        for v in range(4): A(f"v_add_f32_dpp v{t+v}, v{Dr+4+v}, v{Dr+4+v} "+dpp("row_ror:8",0xc))
        A(f"v_add_f32_dpp {u0}, v{t}, v{t} "+dpp("row_shl:4",0x5))
        A(f"v_add_f32_dpp {u1}, v{t+1}, v{t+1} "+dpp("row_shl:4",0x5))
        A(f"v_add_f32_dpp {u0}, v{t+2}, v{t+2} "+dpp("row_shr:4",0xa))
        A(f"v_add_f32_dpp {u1}, v{t+3}, v{t+3} "+dpp("row_shr:4",0xa))
    def att_gather(it,shadow=None):
        QF=T; ST=T+16; CS=T+20; C=T+44; Dr=T+36; lbl=f"L_att{it}"
        def loads():
            A(f"buffer_load_dwordx2 {d(ST)}, {vST}, {sF}, {0 if it else sT0} offen offset:{0x100*it} sc1")
            A(f"buffer_load_dwordx4 {q(QF)}, {vQG}, {sF}, {sB} offen sc1")
            if it==0: A(f"buffer_load_dwordx4 {q(CS)}, {vQG}, {sF}, {sC} offen sc1")
        if shadow: loads(); shadow(); A(f"s_branch {lbl}_in{M[0]}")
        lab(lbl); stamp(f"a{it}.try")
        loads(); spin()
        if shadow: lab(lbl+"_in")
        st=stats_ops(ST,ST,T+18)
        A("s_waitcnt vmcnt(0)" if it else "s_waitcnt vmcnt(0) lgkmcnt(0)")
        stamp(f"a{it}.got")
        A(f"ds_write_b128 {vQR[0]}, {q(QF)}")
        if it==0: A(f"ds_write_b128 {vQR[0]}, {q(CS)} offset:4096")
        for k in range(4): A(f"v_dot2_f32_bf16 v{C}, v{QF+k}, v{ONES}, v{C if k else ST}")
        if it==0:
            for k in range(4): A(f"v_dot2_f32_bf16 v{C}, v{CS+k}, v{ONES}, v{C}")
        A(st[0]); A(st[1])
        if it: A(f"{MF} {q(Dr)}, {q(KF)}, {q(QF)}, 0")
        A(f"v_cmp_u_f32 vcc, v{C}, v{ST+1}")
        A(st[2]); A(st[3])
        if it: A(f"{MF} {q(Dr+4)}, {q(KF+16)}, {q(QF)}, 0")
        if it: mark()
        retry(lbl)
        A(st[4]); A(st[5])
        barrier(it,7)
        stamp(f"a{it}.bar0")
        return st[6:]
    def att_gather1():
        QF=T; ST=T+16; SI=T+46; C=T+44; Dr=T+36; a=T+18; lbl="L_att1"
        loadQ=lambda: A(f"buffer_load_dwordx4 {q(QF)}, {vQG}, {sF}, {sB} offen sc1")
        wait(o.get("await",1))
        lab(lbl)
        A(f"buffer_load_dwordx2 {d(SI)}, {vST}, {sF}, 0 offen offset:256 sc1")
        spin()
        A("s_waitcnt vmcnt(1)"); stamp("a1.ack"); loadQ()
        st=stats_ops(ST,SI,a)
        A("s_waitcnt vmcnt(1)")
        A(st[0]); A(st[1]); A(f"v_cmp_u_f32 vcc, v{SI}, v{SI+1}")
        for x in st[2:6]: A(x)
        retry(lbl)
        for x in st[6:]+scale_ops(): A(x)
        lab(lbl+"_q")
        A("s_waitcnt vmcnt(0)"); stamp("a1.got")
        A(f"ds_write_b128 {vQR[0]}, {q(QF)}")
        for k in range(4): A(f"v_dot2_f32_bf16 v{C}, v{QF+k}, v{ONES}, {'v%d'%C if k else 0}")
        A(f"{MF} {q(Dr)}, {q(KF)}, {q(QF)}, 0")
        A(f"v_cmp_u_f32 vcc, v{C}, v{C}")
        A(f"{MF} {q(Dr+4)}, {q(KF+16)}, {q(QF)}, 0")
        mark(); retry(lbl+"_again")
        barrier(1,7)
        stamp("a1.bar0")
        def warm():
            lab(lbl+"_again"); loadQ(); spin(False); A(f"s_branch {lbl}_q{M[0]}")
        (COLD if M[0] else WARM).append((M[0],warm))
        return None
    def scale_ops():
        ST=T+16; a=T+18
        return [f"v_mul_f32 v{a}, 0x3e0293ee, v{a}",
                f"v_mul_f32 v{a+1}, v{ST+1}, v{a}",
                f"v_pk_mul_f32 {d(ST)}, v[{vCS0[1:]}:{vCS1[1:]}], {d(a)} op_sel:[0,1] op_sel_hi:[1,1]"]
    def att_scores(it,st):
        QF=T; ST=T+16; CS=T+20; Dr=T+36; t=T+44; U=T+48; a=T+18
        if it==0:
            for s in range(1,4): A(f"ds_read_b128 {q(CS+4*s)}, {vQR[s]} offset:4096")
        for s in range(1,4): A(f"ds_read_b128 {q(QF+4*s)}, {vQR[s]}")
        if it==0:
            A("s_waitcnt lgkmcnt(3)")
            if o.get("exp_nocs"): A(f"v_mov_b32 {vCS0}, 0"); A(f"v_mov_b32 {vCS1}, 0")
            else:
                for s in range(4):
                    for tt in range(2): A(f"{MF} {q(Dr+4*tt)}, {q(KF+16*tt+4*s)}, {q(CS+4*s)}, {'0' if s==0 else q(Dr+4*tt)}")
                rs8(vCS0,vCS1,t,Dr)
            for tt in range(2): A(f"{MF} {q(Dr+4*tt)}, {q(KF+16*tt)}, {q(QF)}, 0")
        st=(st+scale_ops() if st is not None else [])+[""]*16
        for x in st[:3]: A(x)
        if it: fill("q0","")
        k=3
        for s in range(1,4):
            A(f"s_waitcnt lgkmcnt({3-s})")
            for tt in range(2):
                A(f"{MF} {q(Dr+4*tt)}, {q(KF+16*tt+4*s)}, {q(QF+4*s)}, {q(Dr+4*tt)}")
                for _ in range(1 if (tt or st[k].startswith("v_rsq")) else 2):
                    if k<len(st): A(st[k]); k+=1
        rs8(f"v{U}",f"v{U+1}",t,Dr)
        A(f"v_pk_fma_f32 {d(U)}, {d(U)}, {d(a)}, {d(ST)} op_sel_hi:[1,0,1] neg_lo:[0,0,1] neg_hi:[0,0,1]")
        m=T+50; tmp=T+51; lbl=f"L_sm{it}"
        stamp(f"a{it}.ok")
        ce=o.get("cmpe",1) if it else 0
        if ce: A(f"v_max_f32 v{m}, |v{U}|, |v{U+1}|")
        A(f"v_exp_f32 v{t}, v{U}")
        if ce==2: A(f"v_cmp_lt_f32 vcc, s10, v{m}")
        A(f"v_exp_f32 v{t+1}, v{U+1}")
        if ce==1: A(f"v_cmp_lt_f32 vcc, s10, v{m}")
        if not ce: A(f"v_max_f32 v{m}, |v{U}|, |v{U+1}|")
        A(f"v_cvt_pk_bf16_f32 v{t}, v{t}, v{t+1}")
        if it: late("p")
        A(f"ds_write2st64_b32 {vPW}, v{t}, {vZ} offset0:{8*it} offset1:{8*it+4}")
        if not ce: A(f"v_cmp_lt_f32 vcc, s10, v{m}")
        retry(lbl+"_max")
        lab(lbl+"_done")
        def cold():
            lab(lbl+"_max")
            A(f"v_max_f32 v{m}, v{U}, v{U+1}")
            A(f"v_max_f32_dpp v{m}, v{m}, v{m} "+dpp("row_ror:4"))
            A(f"v_max_f32_dpp v{tmp}, v{m}, v{m} "+dpp("row_ror:8"))
            A(f"v_max_f32_dpp v{m}, v{m}, v{m} "+dpp("row_ror:8"))
            A(f"v_permlane16_swap_b32 v{m}, v{tmp}")
            A(f"v_max_f32 v{t}, v{m}, v{tmp}"); A(f"v_max_f32 v{m}, v{m}, v{tmp}")
            A(f"v_permlane32_swap_b32 v{m}, v{t}"); A(f"v_max_f32 v{m}, v{m}, v{t}")
            A(f"v_pk_add_f32 {d(U)}, {d(U)}, {d(m)} op_sel_hi:[1,0] neg_lo:[0,1] neg_hi:[0,1]")
            A(f"v_exp_f32 v{U}, v{U}"); A(f"v_exp_f32 v{U+1}, v{U+1}")
            A(f"v_cvt_pk_bf16_f32 v{U}, v{U}, v{U+1}")
            A(f"ds_write2st64_b32 {vPW}, v{U}, v{m} offset0:{8*it} offset1:{8*it+4}")
            A("s_waitcnt lgkmcnt(0)")
            A(f"s_branch {lbl}_done{M[0]}")
        COLD.append((M[0],cold))
    def att_pv(it):
        B=T; BA=T+16; LA=T+20; ACC=T+24; m=T+32; al=T+34; Mx=T+36; Ls=T+37; t=T+40; U=T+44; lbl=f"L_pv{it}"
        stamp(f"a{it}.bar1")
        def mm(s,u): A(f"{MF} {q(ACC+4*u)}, {q(VF+8*s+4*u)}, {q(B+4*s)}, {q(ACC+4*u) if s else 0}")
        po=2048*it
        lab(lbl)
        A(f"ds_read_b128 {q(B)}, {vPF0} offset:{po}"); A(f"ds_read_b32 v{m}, {vPR} offset:{po+1024}")
        for s in range(1,4): A(f"ds_read_b128 {q(B+4*s)}, {vPF1 if s&2 else vPF0} offset:{po+256*s}")
        A(f"ds_read_b128 {q(BA)}, {vPR} offset:{po}")
        A(f"v_mov_b32 v{Mx}, 0")
        if it and o.get("pvpad",0): padsite()
        A("s_waitcnt lgkmcnt(5)")
        mm(0,0); A("s_waitcnt lgkmcnt(3)"); A(f"v_cmp_neq_f32 vcc, 0, v{m}")
        mm(0,1); mm(1,0)
        if it and o.get("pvpad",0): mark()
        retry(lbl+"_mix")
        mm(1,1); A("s_waitcnt lgkmcnt(0)")
        la=lambda: A(f"{MF} {q(LA)}, {q(ONES)}, {q(BA)}, 0")
        l1=lambda: A(f"v_add_f32_dpp v{Ls}, v{LA}, v{LA} "+dpp("row_ror:4"))
        l2=lambda: A(f"v_add_f32_dpp v{Ls}, v{Ls}, v{Ls} "+dpp("row_ror:8"))
        cv=lambda k: A(f"v_cvt_pk_bf16_f32 v{U+k}, v{ACC+2*k}, v{ACC+2*k+1}")
        if o.get("lalast",0):
            mm(2,0); mm(3,0); mm(2,1); mm(3,1); la()
            for k in range(4): cv(k)
            fstore("buffer_store_dwordx4",q(U),vAP4,0); l1(); l2()
        else:
            mm(2,0); mm(3,0); la(); mm(2,1); mm(3,1)
            ps=o.get("pvst",2)
            if ps<2:
                l1(); cv(0); cv(1); l2()
                if ps: A("s_mov_b64 exec, s[12:13]")
                cv(2); cv(3)
                fstore("buffer_store_dwordx4",q(U),vAP4,0)
                if ps: A("s_mov_b64 exec, -1")
            else:
                cb=lambda k: A(f"v_cvt_pk_bf16_f32 v{U}, v{ACC+2*k}, v{ACC+2*k+1}")
                l1(); cb(0); A("s_nop 0"); l2()
                if o.get("mlf",1): fstore("buffer_store_dwordx2",d(Mx),vLP,0,0x400*it)
                for k in range(1,4): A(f"s_mov_b64 exec, s[{12+2*k}:{13+2*k}]"); cb(k)
                A("s_mov_b64 exec, -1")
                fstore("buffer_store_dword",f"v{U}",vAP,0)
        lab(lbl+"_done")
        if it: recheck("p",ACC,Ls,lbl)
        if not o.get("mlf",1): fstore("buffer_store_dwordx2",d(Mx),vLP,0,0x400*it)
        def cold():
            lab(lbl+"_mix")
            A("s_waitcnt lgkmcnt(0)"); A("s_nop 7")
            if it: A(f"v_mov_b32 v14, {L_ZERO-po}")
            for s in range(4):
                if it:
                    A(f"v_cndmask_b32 v15, v14, {vPR}, s[{12+2*s}:{13+2*s}]"); A(f"ds_read_b128 {q(B+4*s)}, v15 offset:{po}")
                else: A(f"ds_read_b128 {q(B+4*s)}, {vPB[s]}")
            A(f"{MF} {q(LA)}, {q(ONES)}, {q(BA)}, 0")
            A(f"v_max_f32_dpp v{Mx}, v{m}, v{m} "+dpp("row_ror:4"))
            A(f"v_max_f32_dpp v{Mx}, v{Mx}, v{Mx} "+dpp("row_ror:8"))
            A(f"v_sub_f32 v{al}, v{m}, v{Mx}"); A(f"v_exp_f32 v{al}, v{al}")
            A(f"v_mul_f32 v{Ls}, v{al}, v{LA}")
            A(f"v_add_f32_dpp v{Ls}, v{Ls}, v{Ls} "+dpp("row_ror:4"))
            A(f"v_add_f32_dpp v{Ls}, v{Ls}, v{Ls} "+dpp("row_ror:8"))
            A("s_waitcnt lgkmcnt(0)")
            for s in range(4): mm(s,0); mm(s,1)
            for r in range(0,8,2): A(f"v_pk_mul_f32 {d(ACC+r)}, {d(ACC+r)}, {d(al)} op_sel_hi:[1,0]")
            rs8(f"v{U}",f"v{U+1}",t,ACC)
            A(f"v_cvt_pk_bf16_f32 v{U}, v{U}, v{U+1}")
            fstore("buffer_store_dword",f"v{U}",vAP,0)
            if o.get("mlf",1): fstore("buffer_store_dwordx2",d(Mx),vLP,0,0x400*it)
            A(f"s_branch {lbl}_done{M[0]}")
        COLD.append((M[0],cold))
    def wo_stage(it,lbl):
        X=T; LM=T+8; Dr=T+12; Mx=T+10; wv=T+11; ACC=T+28; U=T+32; Ls=T+35
        W4=T+36
        stamp(lbl+".ack"); lab(lbl); stamp(lbl+".try")
        A(f"buffer_load_dwordx2 {d(LM)}, {vLG}, {sF}, 0 offen offset:{0x400*it} sc1")
        A(f"buffer_load_dwordx4 {q(X)}, {vAG}, {sF}, 0 offen sc1")
        A(f"buffer_load_dwordx4 {q(X+4)}, {vAG}, {sF}, 0 offen offset:1024 sc1")
        spin()
        sm=lambda k,src=None: A(f"v_add_f32_dpp v{Ls}, v{src or Ls}, v{src or Ls} "+dpp(R16[k]))
        A("s_waitcnt vmcnt(2)")
        A(f"v_cmp_neq_f32 vcc, 0, v{LM}")
        sm(0,LM+1)
        we=o.get("wearly",1)
        A("s_waitcnt vmcnt(1)")
        A(f"{MF} {q(Dr)}, {q(SEL)}, {q(X)}, 0")
        if we:
            if not o.get("mlf",1): mark()
            retry(lbl+"_chk")
        A("s_waitcnt vmcnt(0)"); stamp(lbl+".got")
        A(f"{MF} {q(Dr)}, {q(SEL)}, {q(X+4)}, {q(Dr)}")
        if o.get("mlf",1):
            assert we
            A(f"v_max_u32 v{U}, v{X}, v{X+4}"); A(f"v_cmp_eq_u32 vcc, -1, v{U}"); sm(1); sm(2); mark(); retry(lbl)
        else:
            if not we: mark(); retry(lbl+"_chk")
            sm(1)
            sm(2)
        rs4(U,U+1,U+2,Dr)
        lab(lbl+"_sum")
        A(f"v_cvt_pk_bf16_f32 v{U+1}, v{U}, v{U}")
        if it: late("w")
        A(f"ds_write_b16 {vXW}, v{U+1} offset:{L_OB1 if it else L_OB}")
        xf=o.get("exp_fastw") and it
        if not xf:
            A(f"v_cmp_u_f32 vcc, v{U}, v{Ls}")
            A(f"v_add_f32_dpp v{U}, v{Ls}, v{Ls} "+dpp(R16[3]))
        def warm():
            lab(lbl+"_chk")
            A(f"v_cmp_u_f32 vcc, v{LM}, v{LM+1}"); retry(lbl); A(f"s_branch {lbl}_mix{M[0]}")
        def cold():
            lab(lbl+"_mix")
            A("s_waitcnt vmcnt(0)"); A("s_nop 7")
            for k in range(4): A(f"{MF} {q(Dr+4*k)}, {q(SELU+4*(k&1))}, {q(X+4*(k>>1))}, 0")
            for k in range(4): A(f"v_max_f32_dpp v{Mx}, v{Mx if k else LM}, v{Mx if k else LM} "+dpp(R16[k]))
            A(f"v_mov_b32 v{wv}, v{Mx}"); A(f"v_permlane32_swap_b32 v{Mx}, v{wv}"); A(f"v_max_f32 v{Mx}, v{Mx}, v{wv}")
            A(f"v_sub_f32 v{wv}, v{LM}, v{Mx}"); A(f"v_exp_f32 v{wv}, v{wv}")
            A(f"v_mul_f32 v{Ls}, v{wv}, v{LM+1}")
            for k in range(4):
                for r in range(4):
                    A(f"{'v_mul_f32_dpp' if k==0 else 'v_fmac_f32_dpp'} v{ACC+r}, v{wv}, v{Dr+4*k+r} "+dpp(f"quad_perm:[{k},{k},{k},{k}]"))
            for k in range(3): sm(k)
            rs4(U,U+1,U+2,ACC)
            A(f"v_mov_b32 v{U+1}, v{U}")
            A(f"v_permlane32_swap_b32 v{U}, v{U+1}"); A(f"v_add_f32 v{U}, v{U}, v{U+1}")
            A(f"s_branch {lbl}_sum{M[0]}")
        (COLD if M[0] else WARM).append((M[0],warm)); COLD.append((M[0],cold))
        if not xf:
            retry(lbl)
            stamp(lbl+".ok")
            A(f"v_mov_b32 v{Ls}, v{U}")
        lw("w" if it else "-"); bar("w" if it else "-")
        stamp(lbl+".bar")
        if it==0: A(f"ds_read_b32 v15, {vZ} offset:{L_SYNC+16}")
        g=gemv(WO,"O",it,f"v{Ls}"); next(g)
        if xf: A(f"v_add_f32_dpp v{U}, v{Ls}, v{Ls} "+dpp(R16[3])); A(f"v_add_f32_dpp v{Ls}, v{Ls}, v{Ls} "+dpp(R16[3]))
        A(f"v_permlane32_swap_b32 v{Ls}, v{U}"); A(f"v_add_f32 v{Ls}, v{Ls}, v{U}"); A(f"v_rcp_f32 v{Ls}, v{Ls}")
        next(g)
        next(g)
        spublish(T+4,2*it)
        if it and "w" in NW:
            A(f"v_cmp_u_f32 vcc, v{T+4}, v{T+4}"); retry(lbl+"_redo"); lab(lbl+"_end")
            def cold2():
                lab(lbl+"_redo"); spin(False); run(gemv(WO,"O",it,f"v{Ls}")); spublish(T+4,2*it)
                A(f"v_cmp_u_f32 vcc, v{T+4}, v{T+4}"); retry(lbl+"_redo"); A(f"s_branch {lbl}_end{M[0]}")
            COLD.append((M[0],cold2))
        if it==0:
            A(f"v_readfirstlane_b32 {sN}, v15")
    def down_stage(it,lbl):
        G=T+4; Uq=T+5; E=T+6; ST=T+8; rs=T+10; X=T+12; Dr=T+16
        P=T+36; SI=T+40; CS=T+44
        Bq=T+2; nP=2 if it==0 else 1
        def loadP():
            A(f"buffer_load_dwordx4 {q(P)}, {vUG}, {sF}, {sA if it else 0} offen sc1")
            if it==0: A(f"buffer_load_dwordx4 {q(CS)}, {vUG}, {sF}, {sT0} offen sc1")
        dot=lambda dst,src,acc: A(f"v_dot2_f32_bf16 {dst}, v{src}, v{ONES}, {acc}")
        stamp(lbl+".ack"); lab(lbl)
        A(f"buffer_load_dwordx2 {d(SI)}, {vST}, {sF}, 0 offen offset:{0x100*it+0x80} sc1")
        spin(); wait(o.get("dgap",1)); loadP()
        st=stats_ops(ST,SI,rs)
        A(f"s_waitcnt vmcnt({nP})")
        A(st[0]); A(st[1]); A(f"v_cmp_u_f32 vcc, v{SI}, v{SI+1}")
        A(st[2]); A(st[3]); loadP()
        A(st[4]); A(st[5]); retry(lbl)
        for x in st[6:]: A(x)
        if it: A(f"v_pk_mul_f32 {d(Bq)}, {d(ST)}, v[{vCSG[1:]}:{vCSU[1:]}] op_sel:[1,0] neg_lo:[1,0] neg_hi:[1,0]")
        A(f"v_mul_f32 v{rs+1}, 0xbfb8aa3b, v{rs}")
        lab(lbl+"_p")
        A(f"s_waitcnt vmcnt({nP})"); stamp(lbl+".got")
        if it==0:
            dot(vCSG,CS,0); dot(vCSU,CS+2,0); dot(vCSG,CS+1,vCSG); dot(vCSU,CS+3,vCSU)
            A(f"v_pk_mul_f32 {d(Bq)}, {d(ST)}, v[{vCSG[1:]}:{vCSU[1:]}] op_sel:[1,0] neg_lo:[1,0] neg_hi:[1,0]")
        dot(f"v{G}",P,f"v{Bq}"); dot(f"v{G}",P+1,f"v{G}"); dot(f"v{Uq}",P+2,f"v{Bq+1}"); dot(f"v{Uq}",P+3,f"v{Uq}")
        A(f"v_mul_f32 v{E}, v{G}, v{rs+1}")
        A(f"v_exp_f32 v{E}, v{E}")
        A(f"v_cmp_u_f32 vcc, v{G}, v{Uq}")
        def warm():
            lab(lbl+"_again"); loadP(); spin(False); A(f"s_branch {lbl}_p{M[0]}")
        (COLD if M[0] else WARM).append((M[0],warm))
        A(f"v_add_f32 v{E}, 1.0, v{E}")
        A(f"v_rcp_f32 v{E}, v{E}")
        A(f"v_pk_mul_f32 {d(G)}, {d(G)}, {d(rs)} op_sel_hi:[1,0]")
        A(f"v_mul_f32 v{G}, v{G}, v{E}")
        if o.get("dbr",1): mark(); retry(lbl+"_again")
        A(f"v_mul_f32 v{G}, v{G}, v{Uq}")
        A(f"v_cvt_pk_bf16_f32 v{E}, v{G}, v{G}")
        late("d")
        A(f"ds_write_b16 {vHW}, v{E} offset:{L_HB+128*it}")
        if "d" in XL: A(f"s_branch {lbl}_t{M[0]}")
        if not o.get("dbr",1): retry(lbl+"_again")
        stamp(lbl+".ok")
        lw("d"); lab(lbl+"_b")
        A("s_barrier")
        lab(lbl+"_t")
        A(f"ds_read_b128 {q(X)}, {vHR} offset:{L_HB+128*it}")
        A("s_waitcnt lgkmcnt(0)")
        A(f"{MF} {q(Dr)}, {q(X)}, {q(W2)}, 0"); A(f"{MF} {q(Dr+4)}, {q(X)}, {q(W2+4)}, 0")
        A(f"v_add_f32 v{Dr}, v{Dr}, v{Dr+5}")
        spublish(Dr,2*it+1)
        recheck("d",Dr,Dr,lbl+"_t")

    def bumpE():
        A(f"s_or_b32 s48, s2, {sw}"); A(f"s_cselect_b32 s48, {OOB:#x}, 0"); A(f"s_add_u32 s48, s48, {WS_E:#x}"); A(f"v_mov_b32 v15, {stag}")
        A(f"buffer_store_dword v15, {vZ}, {sW}, s48 offen sc1")
    def clr23():
        for r_ in ("s50","s51"): A(f"buffer_store_dword {vNAN}, v12, {sW}, {r_} offen sc1")
    def w2frags():
        A(f"v_and_b32 v15, 0xfff, {vWR}")
        for t in range(2):
            for hh in range(2): A(f"ds_read_b64_tr_b16 {d(W2+4*t+2*hh)}, v15 offset:{L_W2+4096*t+2048*hh}")
    def chain():
        rid[0]=0
        A("s_mov_b32 s45, 0x3727c5ac")
        run(gemv(WQ,"Q",0,xs=xstat()))
        stamp("Qpub0")
        if not M[0] and not o.get("exp_nohs"):
            lds_wait(1,1,mask=True)
            A("v_readfirstlane_b32 s44, v15"); A("s_lshr_b32 s44, s44, 16"); A("s_cbranch_scc0 L_slow")
        stamp("B1")
        A(f"v_cmp_gt_u32 vcc, 16, v0"); A(f"v_subrev_u32 {vQP}, {F_Q0-F_Q1:#x}, {vQP}"); A(f"v_cndmask_b32 {vQP}, v13, {vQP}, vcc")
        if o["qwait"]=="ack": A("s_waitcnt vmcnt(0)")
        else: lds_wait(0,o["qwait"])
        def kfrags():
            stamp("qiss")
            lds_wait(0,AT["K"])
            stamp("K")
            for s in range(4):
                if s: A(f"v_xor_b32 v15, {64*s}, v7")
                for t in range(2): A(f"ds_read_b128 {q(KF+16*t+4*s)}, v{15 if s else 7} offset:{4096*t}")
        st=att_gather(0,kfrags)
        stamp("qgot0")
        att_scores(0,st)
        barrier(0,2)
        stamp("qg0")
        A(f"s_mov_b32 {sB}, {F_Q1:#x}"); A(f"s_mov_b32 {sT0}, 0x1000")
        hop()
        if AT["O"]<AT["V"]:
            if AT["O"]>AT["K"]: lds_wait(0,AT["O"])
            wfrags(WO,L_WO)
        vs=o.get("vsplit",0)
        assert not vs or IL[1]==0
        for e in range(8):
            if e==0 and vs: lds_wait(0,AT["V"]-(8-vs))
            if e==vs: lds_wait(0,AT["V"]); stamp("V")
            for hh in range(2): A(f"ds_read_b64_tr_b16 {d(VF+4*e+2*hh)}, v8 offset:{8192*(e>>1)+4096*hh+8*(e&1)}")
        att_pv(0)
        if o.get("hold"): lds_arrive(3)
        stamp("Apub0")
        hop()
        if AT["O"]>AT["V"]: lds_wait(0,AT["O"]); wfrags(WO,L_WO)
        ww=o.get("wwait","ack")
        if ww=="ack": A("s_waitcnt vmcnt(0)")
        else: lds_wait(0,ww)
        stamp("all")
        for it in range(2):
            wo_stage(it,f"L_wo{it}")
            stamp(f"WOpub{it}")
            if it==0:
                A(f"s_lshr_b32 {sG0}, {sg}, 1"); A(f"s_lshl_b32 {sG0}, {sG0}, 15"); A(f"s_add_u32 {sG0}, {sG0}, {sN}")
                for k,r_ in enumerate((sG1,sG2,sG3)): A(f"s_xor_b32 {r_}, {sG0}, {0x8000*(k+1):#x}")
                A(f"v_readfirstlane_b32 s48, {vSP}"); A("s_andn2_b32 s48, s48, 0x2820"); A(f"s_mul_i32 s49, {sw}, {sw}"); A("s_lshl_b32 s49, s49, 16"); A("s_add_u32 s48, s48, s49"); A(f"s_add_u32 s48, s48, {WS_S1+0x40000:#x}")
                A(f"s_cmp_eq_u32 {sw}, 3"); A(f"s_cselect_b32 s48, {OOB:#x}, s48")
                A("v_and_b32 v14, 15, v0"); A("v_lshlrev_b32 v14, 2, v14"); A("v_and_b32 v15, 1, v1"); A("v_lshl_add_u32 v14, v15, 11, v14"); A("v_lshrrev_b32 v15, 5, v0"); A("v_lshl_add_u32 v14, v15, 13, v14")
                A(f"buffer_store_dword {vNAN}, v14, {sW}, s48 offen sc1")
                wfrags(WU,L_WU)
                if o.get("w2early",1): w2frags()
                if o.get("split0",0):
                    wait(o.get("s0a",0))
                    for t in range(3): s0load(t)
            if it==1 and o.get("bumpat",1)==2: bumpE()
            sack(2*it,(1+3*o.get("split0",0)) if it==0 else 0)
            run(gemv(WU,"U",it,xs=sg_head(f"L_su{it}",2*it)))
            A(f"s_mov_b32 {sR}, {WS_S1+0x40000*2*it:#x}")
            if it==0 and o.get("lateclr",1)==3: clr23()
            if it==0 and o.get("skew") is not None:
                A("s_lshl_b32 s48, s2, 2"); A("s_add_u32 s48, s48, 0x58000"); A(f"s_lshl2_add_u32 s49, {sc}, {sw}"); A("s_cmp_eq_u32 s49, 64"); A(f"s_cselect_b32 s48, s48, {OOB:#x}"); A("v_mov_b32 v14, s70"); A(f"buffer_store_dword v14, {vZ}, {sW}, s48 offen sc1")
            stamp(f"Upub{it}")
            if it==0:
                A(f"v_cmp_gt_u32 vcc, 16, v0")
                A(f"v_add_u32 {vUP}, 0x2000, {vUP}"); A(f"v_cndmask_b32 {vUP}, v13, {vUP}, vcc")
                A(f"ds_read_u16_d16_hi {vCAR}, {vXW} offset:{L_XU}")
                if not o.get("w2early",1):
                    w2frags(); A("s_waitcnt lgkmcnt(0)")
            else:
                A("v_and_b32 v14, 16, v0"); A("v_cmp_eq_u32 vcc, 0, v14"); A(f"v_cndmask_b32 {vSP}, v13, {vSP}, vcc")
            A(f"s_cmp_eq_u32 {sw}, {o.get('dw',3)}"); A(f"s_cbranch_scc0 L_dn{it}_b{M[0]}")
            fwait(f"D{it}")
            down_stage(it,f"L_dn{it}")
            if it and o.get("wb") and not M[0]: A(f"buffer_store_dword {vNAN}, {vAP}, {sF}, 0 offen sc1")
            stamp(f"Dpub{it}")
            if it==0:
                fstore("buffer_store_dword",vNAN,vAP,0)
                if o.get("bumpat",1)==1: bumpE()
                sack(1,2 if o.get("bumpat",1)==1 else 1)
                run(gemv(WQ,"Q",1,xs=sg_head("L_sq1",1)))
                A(f"s_mov_b32 {sR}, {WS_S1+0x40000:#x}")
                stamp("Q.pub1")
                if o.get("aearly",1): att_scores(1,att_gather1())
                else: fwait("A"); stamp("a1.ack"); att_scores(1,att_gather(1))
                fill("p0",""); lw("p"); bar("p"); fill("p2","")
                att_pv(1)
                stamp("A.pub1")
                fwait("W")
    chain()
    A("L_last:")
    A(f"s_xor_b32 s48, {snb}, {sw}"); A(f"s_xor_b32 s49, {sg}, {o.get('fing',0)}"); A("s_or_b32 s48, s48, s49"); A("s_cbranch_scc1 L_fin")
    sack(3)
    sg_head("L_sf",3)
    A("L_fin:")
    if o.get("pad"):
        stamp("end") if not stamps else None
        A("s_waitcnt lgkmcnt(0)")
        if o["pad"][1]=="none": A("s_mov_b32 s72, s70")
        if o.get("skew") is not None:
            A(f"s_cmp_eq_u32 s2, {o['pad'][3]}"); A("s_cbranch_scc0 L_exit")
            A("s_load_dwordx8 s[76:83], s[36:37], 0x58200 glc"); A("s_waitcnt lgkmcnt(0)")
            for k in range(1,8): A(f"s_sub_u32 s{76+k}, s{76+k}, s76")
            A("s_mov_b32 s76, 0"); A("s_mov_b32 s84, 0"); A("s_mov_b32 s85, 0")
            for k in range(1,8): A(f"s_min_i32 s84, s84, s{76+k}"); A(f"s_max_i32 s85, s85, s{76+k}")
            A(f"s_sub_u32 s72, s{76+o['skew']}, s84"); A("s_add_u32 s72, s72, s70")
        if len(o["pad"])>2: A("s_sub_u32 s72, s72, s70"); A(f"s_mul_i32 s72, s72, {o['pad'][2]}"); A("s_add_u32 s72, s72, s70")
        if len(o["pad"])>3: A(f"s_cmp_eq_u32 s2, {o['pad'][3]}"); A("s_cbranch_scc0 L_exit")
        A(f"s_add_u32 s72, s72, {o['pad'][0]}")
        A("L_pad:"); A("s_memrealtime s[74:75]"); A("s_waitcnt lgkmcnt(0)"); A("s_sub_u32 s76, s74, s72"); A("s_cmp_lt_i32 s76, 0"); A("s_cbranch_scc1 L_pad")
    if stamps: stamp("end"); dump(sw)
    A("s_endpgm")
    if o.get("hopend"): hop()
    emit(WARM)
    A("L_hotend:")
    A("L_giveup:")
    A("s_waitcnt vmcnt(0)")
    if stamps: A("s_or_b32 s3, s3, 0x100")
    bumpE()
    for wd in (2,3,7): A(f"ds_add_u32 {vZ}, {vONE} offset:{L_SYNC+4*wd}")
    A(f"s_xor_b32 s48, {snb}, {sw}"); A(f"s_xor_b32 s49, {sg}, {o.get('fing',0)}"); A("s_or_b32 s48, s48, s49"); A("s_cbranch_scc1 L_fin")
    A(f"buffer_store_short {vNAN}, {vOUT}, {sL}, 0 offen"); A("s_branch L_fin")
    A("L_hvec:")
    A("v_and_b32 v13, 31, v0"); A("v_lshlrev_b32 v14, 2, v13"); A("v_lshlrev_b32 v15, 7, v13")
    A("v_mov_b32 v16, s42"); A("s_mov_b64 exec, 1")
    A(f"buffer_store_dword v16, {vZ}, {sW}, {sR} offen sc1")
    A("s_mov_b64 exec, -1")
    A("L_hvec1:")
    A(f"buffer_load_dword v17, v14, {sW}, {sA} offen sc1")
    A(f"buffer_load_dword v18, v15, {sW}, {sN} offen sc1")
    A("v_mov_b32 v13, 1")
    A(f"s_sub_u32 {sspin}, {sspin}, 1"); A("s_cbranch_scc1 L_hsig")
    A("s_waitcnt vmcnt(0)")
    A("v_and_b32 v17, 0xffffffe7, v17"); A("v_mov_b32 v13, 0x10001")
    A("v_cmp_ne_u32 vcc, s42, v17"); A("s_cbranch_vccz L_hsig")
    A(f"v_xor_b32 v19, {stag}, v18"); A("v_cmp_lt_u32 vcc, 7, v19"); A("s_cbranch_vccnz L_hvec1")
    A("v_cmp_ne_u32 vcc, s42, v18"); A("s_cbranch_vccz L_hvec1")
    A(f"s_add_u32 {sB}, {sB}, {WS_SLOW:#x}"); A(f"s_add_u32 {sT1}, {sT1}, {WS_SLOW:#x}")
    A("s_mov_b64 exec, s[50:51]"); A(f"buffer_store_dwordx4 v[8:11], v3, {sW}, {sT1} offen sc1"); A("s_mov_b64 exec, -1")
    for k in range(2): A(f"buffer_store_dwordx4 v[8:11], {vL16}, {sW}, {sB} offen offset:{1024*k} sc1")
    A(f"v_mov_b32 v16, {stag}"); A("v_mov_b32 v13, 1")
    A("s_waitcnt vmcnt(0)")
    A("s_mov_b64 exec, 1")
    A(f"buffer_store_dword v16, {vZ}, {sW}, {sR} offen offset:4 sc1")
    A("s_mov_b64 exec, -1")
    A("L_hvec2:")
    A(f"buffer_load_dword v18, v15, {sW}, {sN} offen offset:4 sc1")
    A(f"s_sub_u32 {sspin}, {sspin}, 1"); A("s_cbranch_scc1 L_hsig")
    A("s_waitcnt vmcnt(0)")
    A(f"v_cmp_ne_u32 vcc, {stag}, v18"); A("s_cbranch_vccnz L_hvec2")
    A("L_hsig:")
    A("s_mov_b64 exec, 1"); A(f"ds_add_u32 {vZ}, v13 offset:{L_SYNC+4}")
    hstamp(2)
    A("s_branch L_hok")
    if stamps:
        A("L_hdump:"); A("s_mov_b64 exec, -1"); dump("4"); A("s_endpgm")
        A("L_ldump:"); ws_srd(); dump("5"); A("s_endpgm")
    A("L_slow:")
    A(f"s_add_u32 s40, s40, {WS_SLOW:#x}"); A("s_addc_u32 s41, s41, 0")
    M[0]="s"; chain(); A("s_branch L_last"); emit(COLD)
    txt=HEADER+f"; @launch grid=(256,1,1) block=(512,1,1) lds={LDS_BYTES}\n"
    txt+=f""".amdgcn_target "amdgcn-amd-amdhsa--gfx950"
.text
.globl {NAME}_kernel
.p2align 12
.fill 832, 4, 0xbf810000
.p2align 8
.type {NAME}_kernel,@function
{NAME}_kernel:
"""+A.text()+f""".section .rodata,"a"
.p2align 6
.amdhsa_kernel {NAME}_kernel
  .amdhsa_next_free_vgpr 256
  .amdhsa_next_free_sgpr 102
  .amdhsa_accum_offset 256
  .amdhsa_group_segment_fixed_size 0
  .amdhsa_kernarg_size 96
  .amdhsa_user_sgpr_count 2
  .amdhsa_user_sgpr_kernarg_segment_ptr 1
  .amdhsa_system_sgpr_workgroup_id_x 1
  .amdhsa_float_denorm_mode_32 3
.end_amdhsa_kernel
"""
    return txt, names
def labels(txt):
    import subprocess,re
    open("_h.s","w").write(txt.replace(".fill 832, 4",".fill 1024, 4"))
    subprocess.run(["clang","-x","assembler","-target","amdgcn-amd-amdhsa","-mcpu=gfx950","-c","_h.s","-o","_h.o"],check=True)
    out=subprocess.run(["llvm-readelf","-s","-W","_h.o"],capture_output=True,text=True).stdout
    L={m.group(2):int(m.group(1),16) for m in re.finditer(r"^\s*\d+: ([0-9a-f]+) .* (\S+)$",out,re.M)}
    return {k:v-L[NAME+"_kernel"] for k,v in L.items()}
def gen(stamps=False, opts=None):
    o=dict(opts or {})
    if o.get("warm",1)==0: o["_hops"]=None; return gen1(stamps,o)
    L=labels(gen1(stamps,o)[0])
    c=sorted((v,int(k[2:])) for k,v in L.items() if k.startswith("HC")); end=L["L_hotend"]
    pick=[]; last=None
    for i,(a,k) in enumerate(c):
        nxt=(c[i+1][0] if i+1<len(c) else end)
        if last is None or nxt-last>o.get("hopgap",640): pick.append(k); last=a
    page=[]
    for _ in range(4):
        pk=sorted(set(pick)|set(page)); h=(len(pk)+1)//2
        o["_hops"]=[pk[:h][::-1],pk[h:][::-1]]; o["_page"]=page; o["_pads"]={}
        if o.get("bral",1):
            for k in sorted(int(x[2:]) for x in L if x.startswith("BR")):
                o["_pads"][k]=((o.get("brk",{}).get(k,o.get("brat",4))-labels(gen1(stamps,o)[0])[f"BR{k}"])%o.get("brmod",64))//4
        if not o.get("pageal",1): break
        L2=labels(gen1(stamps,o)[0]); c2=sorted((v,int(k[2:])) for k,v in L2.items() if k.startswith("HC"))
        miss=[k for i,(a,k) in enumerate(c2) if k not in page and -a%4096<=o.get('pagemax',700) and a//4096!=((c2[i+1][0] if i+1<len(c2) else L2["L_hotend"])-4)//4096]
        if not miss: break
        page=page+miss[:1]
    return gen1(stamps,o)
if __name__=="__main__":
    txt,names=gen(stamps=False)
    open(sys.argv[1] if len(sys.argv)>1 else "cdna_kernels/"+NAME+".s","w").write(txt)
```

```python
from common import *
import importlib.util, time
import kgen16 as kgen
cfgs=eval(open(sys.argv[1]).read())
genmod={}
def getgen(c):
    m=c.get("gen","kgen16")
    if m not in genmod: genmod[m]=importlib.import_module(m)
    return genmod[m]
if not gpu:
    for i,c in enumerate(cfgs):
        txt,names=getgen(c).gen(c.get("stamps",False),c.get("opts"))
        co=build(txt,f"k{i}",kgen.NAME+"_kernel"); print(c,cl.address_register_problem(co,kgen.NAME+"_kernel"))
    sys.exit(0)
import torch
spec=importlib.util.spec_from_file_location("ref","code/"+kgen.NAME+"_np.py"); ref=importlib.util.module_from_spec(spec); spec.loader.exec_module(ref)
def make(seed,mod=None):
    torch.manual_seed(seed); inp=ref.setup_inputs()
    if mod: mod(inp)
    exp=ref.reference(**inp).float().numpy().ravel()
    i64={k:v.double() for k,v in inp.items()}
    i64["A_k_cache"]=i64["A_k_cache"][:,:,-16384:,:]; i64["A_v_cache"]=i64["A_v_cache"][:,:,-16384:,:]
    exact=ref.reference(**i64).numpy().ravel()
    return inp,exp,exact
inp,exp,exact=make(0)
bufs=[cl.DeviceBuffer.from_numpy(v.view(torch.int16).numpy(),handed=True) for v in inp.values()]
out=cl.DeviceBuffer.handed(1024); dbg=cl.DeviceBuffer.handed(256); ws=cl.DeviceBuffer.handed(512<<20)
ka=cl.pack_ptr_kernargs([b.ptr for b in bufs]+[out.ptr,dbg.ptr,ws.ptr])
wsb=(ws.ptr+0x1fffff)&~0x1fffff
KAS=[ka]; KEEP=[]
for j in range(int(os.environ.get("NALLOC","1"))-1):
    KEEP.append(cl.DeviceBuffer((6+34*j)<<20))
    order=list(range(9)); np.random.default_rng(j).shuffle(order); bb=[None]*9; vals=list(inp.values())
    for i in order: bb[i]=cl.DeviceBuffer.from_numpy(vals[i].view(torch.int16).numpy(),handed=True); KEEP.append(cl.DeviceBuffer((2+2*((i*7+j)%5))<<20))
    KEEP+=bb; KAS.append(cl.pack_ptr_kernargs([b.ptr for b in bb]+[out.ptr,dbg.ptr,ws.ptr]))
ev=build(wrap("ev","\n".join(["v_add3_u32 v5, v5, v5, v5"]*20000)+"\ns_endpgm",grid=1024,block=256),"ev")
evk=cl.AsmKernel(ev,"ev_kernel")
rd=build(wrap("rd","""s_load_dwordx2 s[8:9], s[0:1], 88
s_mov_b32 s10, 0x20000000
s_mov_b32 s11, 0x20000
s_lshl_b32 s4, s2, 12
s_add_u32 s4, s4, 0x800000
v_lshlrev_b32 v1, 4, v0
s_waitcnt lgkmcnt(0)
Lr:
buffer_load_dwordx4 v[4:7], v1, s[8:11], s4 offen
s_add_u32 s4, s4, 0x800000
s_cmp_lt_u32 s4, 0x20000000
s_waitcnt vmcnt(8)
s_cbranch_scc1 Lr
s_waitcnt vmcnt(0)
s_endpgm""",grid=2048,block=256),"rd"); rdk=cl.AsmKernel(rd,"rd_kernel")
rd2=build(wrap("rd2","""s_load_dwordx2 s[8:9], s[0:1], 88
s_mov_b32 s10, 0x800000
s_mov_b32 s11, 0x20000
s_lshl_b32 s4, s2, 12
v_lshlrev_b32 v1, 4, v0
s_waitcnt lgkmcnt(0)
buffer_load_dwordx4 v[4:7], v1, s[8:11], s4 offen
s_waitcnt vmcnt(0)
s_endpgm""",grid=2048,block=256),"rd2"); rd2k=cl.AsmKernel(rd2,"rd2_kernel")
mk=lambda name,off: cl.AsmKernel(build(wrap(name,f"""s_memrealtime s[20:21]
s_load_dwordx2 s[8:9], s[0:1], 80
s_mov_b32 s10, 256
s_mov_b32 s11, 0x20000
v_mov_b32 v2, {off}
s_waitcnt lgkmcnt(0)
v_mov_b32 v8, s20
buffer_store_dword v8, v2, s[8:11], 0 offen
s_endpgm""",grid=1,block=64),name),name+"_kernel")
mA=mk("ma",0); mB=mk("mb",4)
def tof32(u16): return (u16.astype(np.uint32)<<16).view(np.float32)
e0=ctypes.c_void_p(); e1=ctypes.c_void_p(); cl._check(cl._hip.hipEventCreate(ctypes.byref(e0))); cl._check(cl._hip.hipEventCreate(ctypes.byref(e1)))
rng=np.random.default_rng(1)
def tm(x):
    x=np.sort(x); k=len(x)//5; return x[k:len(x)-k].mean()
bak=[cl.DeviceBuffer.from_numpy(v.view(torch.int16).numpy(),handed=True) for v in inp.values()] if any("R" in c.get("seq","") for c in cfgs) else None
def restore():
    for b,s_ in zip(bufs,bak): cl._check(cl._hip.hipMemcpy(b._ptr,s_._ptr,b.nbytes,3))
for ci,c in enumerate(cfgs):
    G=getgen(c)
    txt,names=G.gen(c.get("stamps",False),c.get("opts"))
    co=build(txt,f"k{ci}",kgen.NAME+"_kernel")
    grid,block,lds=cl.parse_launch_directive(txt)
    k=cl.AsmKernel(co,kgen.NAME+"_kernel")
    c['_ks']=[k]; c['_co']=co
    c['_']=dict(G=G,names=names,grid=grid,block=block,lds=lds,k=k,ev_t=[],S=[],errs=[])
for j in range(1,32):
    for ci in rng.permutation(len(cfgs)):
        c=cfgs[ci]
        if c.get("ab") and j<c.get("mods",6): c['_ks'].append(cl.AsmKernel(c['_co'],kgen.NAME+"_kernel",check=False))
for c in cfgs: c.pop('_co')
T0=time.time()
for rep in range(max(c.get('reps',8) for c in cfgs)):
    for ci in rng.permutation(len(cfgs)):
        c=cfgs[ci]
        if rep>=c.get('reps',8): continue
        G,names,grid,block,lds,k,ev_t,S,errs=c['_'].values()
        mode=c.get("mode","clean")
        if c.get("ab"):
            memset(out.ptr,0xFF,1024)
            evk.launch((1024,1,1),(256,1,1),ka,0); rdk.launch((2048,1,1),(256,1,1),ka,0)
            mA.launch((1,1,1),(64,1,1),ka,0); c['_ks'][rep%len(c['_ks'])].launch(grid,block,KAS[(rep//len(c['_ks']))%len(KAS)],lds,numbering=c.get("numbering",0)); mB.launch((1,1,1),(64,1,1),ka,0); sync()
            ab=d2h(dbg.ptr,8).astype(np.int64); ev_t.append((ab[1]-ab[0])*0.01)
            got=tof32(d2h(out.ptr,1024,np.uint16)); errs.append((np.linalg.norm(got-exp)/np.linalg.norm(exp),0,0))
            if c.get("stamps"): S.append(d2h(wsb+G.WS_DBG,256*8*256).reshape(256,8,64)[:,:,:(24 if c.get("brief") else 64)].astype(np.int64))
            continue
        for ch in c.get("seq",""):
            mode="seq"
            if ch=="R": restore()
            if ch=="W": memset(ws.ptr,[0xAA,0x00,0xFF,0x5A][rep%4],512<<20)
            if ch=="F": rdk.launch((2048,1,1),(256,1,1),ka,0)
            if ch=="E": evk.launch((1024,1,1),(256,1,1),ka,0)
            if ch=="S": sync(); time.sleep(0.002)
        if mode in ("cold","clean"):
            evk.launch((1024,1,1),(256,1,1),ka,0)
            memset(ws.ptr,[0xAA,0x00,0xFF,0x5A][rep%4],512<<20)
            if rep%4==3: h2d(wsb,rng.integers(0,2**32,size=(2<<20)//4,dtype=np.uint32)); memset(ws.ptr+(8<<20),1,500<<20)
        if mode=="clean": rdk.launch((2048,1,1),(256,1,1),ka,0)
        if c.get("rd2x"): rdk.launch((2048,1,1),(256,1,1),ka,0)
        if c.get("wsres"): rd2k.launch((2048,1,1),(256,1,1),ka,0)
        if not c.get("nosmall"): memset(out.ptr,0xFF,1024); memset(dbg.ptr,0,256)
        sync()
        cl._check(cl._hip.hipEventRecord(e0,None))
        if c.get("noev"): sync()
        k.launch((grid[0]+c.get("extra",0),1,1),block,ka,lds,numbering=c.get("numbering",0))
        cl._check(cl._hip.hipEventRecord(e1,None)); sync()
        ms=ctypes.c_float(); cl._check(cl._hip.hipEventElapsedTime(ctypes.byref(ms),e0,e1)); ev_t.append(ms.value*1e3)
        got=tof32(d2h(out.ptr,1024,np.uint16))
        errs.append((np.linalg.norm(got-exp)/np.linalg.norm(exp), np.abs(got-exp).max(), np.linalg.norm(got-exact)/np.linalg.norm(exact)))
        if c.get("stamps"): S.append(d2h(wsb+G.WS_DBG,256*8*256).reshape(256,8,64)[:,:,:(24 if c.get("brief") else 64)].astype(np.int64))

print("event loop time",time.time()-T0)
for ci,c in enumerate(cfgs):
    G,names,grid,block,lds,k,ev_t,S,errs=c.pop('_').values()
    nm_=len(c.pop('_ks'))
    if c.get("ab") and not c.get("stamps"):
        print("[se %.3f]"%(np.std([tm(np.array(ev_t[j::nm_])) for j in range(nm_)])/np.sqrt(nm_)),"["+" ".join("%.2f"%tm(np.array([t for r_,t in enumerate(ev_t) if (r_//nm_)%len(KAS)==j])) for j in range(len(KAS)))+"]",end=" ")
        print("AB %.3f (p25 %.2f p75 %.2f) worst err %.5f"%(tm(np.array(ev_t)),np.percentile(ev_t,25),np.percentile(ev_t,75),max(e[0] if e[0]==e[0] else 9 for e in errs)),c.get("gen",""),c.get("numbering",""),c.get("opts"),"BAD",[(i,round(e[0],3)) for i,e in enumerate(errs) if not e[0]<0.007][:8]); continue
    print("CFG",c)
    print("  err rel(ref) %.5f max %.5f rel(exact) %.5f | worst rel %.5f | ref-vs-exact %.5f"%(errs[0]+(max(e[0] if e[0]==e[0] else 9 for e in errs),np.linalg.norm(exp-exact)/np.linalg.norm(exact))))
    print("  event us: med %.1f |"%np.median(ev_t[1:])," ".join("%.1f"%t for t in ev_t))
    if c.get("stamps"):
        nw=c.get("nw",4)
        if c.get("ld"):
            X=np.array(S)[:,:,5,:].astype(float)*0.01
            st=X[:,:,0]; dn=X[:,:,3]
            print("   start by group"," ".join("%.2f"%np.median(np.median(st[:,g::8],1)-st.min(1)) for g in range(8))," done max by group"," ".join("%.2f"%np.median(dn[:,g::8].max(1)-st.min(1)) for g in range(8)))
            print("   LD start range %.2f | done-laststart: med %.2f p90 %.2f max %.2f | own: med %.2f p90 %.2f max %.2f | first16 own %.2f"%(tm(st.max(1)-st.min(1)),tm(np.median(dn,1)-st.max(1)),tm(np.percentile(dn,90,axis=1)-st.max(1)),tm(dn.max(1)-st.max(1)),tm(np.median(dn-st,1)),tm(np.percentile(dn-st,90,axis=1)),tm((dn-st).max(1)),tm(np.median(X[:,:,1]-st,1))))
            k.unload(); continue
        if c.get("save"): np.save("raw%d.npy"%ci,np.array(S)); print(names)
        if c.get("opts",{}).get("cal"):
            TT=[]
            for s in S:
                rt=s[:,:nw,24:64:2].astype(np.float64); mt=s[:,:nw,25:64:2]
                r0=rt.min(); dm=((mt-mt[:,:,:1])&0xffffffff).astype(np.float64)
                T_=np.zeros((256,nw,len(names)))
                for g in range(8):
                    x=(rt[g::8]-rt[g::8,:,:1]); ratio=(x*dm[g::8]).sum()/(x*x).sum()
                    xm=x-x.mean(axis=2,keepdims=True); ratio=(xm*dm[g::8]).sum()/(xm*xm).sum()
                    off=(dm[g::8]-(rt[g::8]-r0)*ratio).min(axis=2)
                    st=-(((mt[g::8,:,:1]-s[g::8,:nw,:len(names)])&0xffffffff).astype(np.float64))
                    T_[g::8]=(st-off[:,:,None])/ratio*24.0
                TT.append(T_)
            TT=np.array(TT); np.save("tt%d.npy"%ci,TT)
            print("   ratio",ratio)
            base=np.median(TT[:,:,:,0],axis=(1,2))
            prev=None
            for j,n in enumerate(names):
                v=TT[:,:,:,j]-base[:,None,None]
                q_=np.median(np.percentile(v,[0,10,50,90,100],axis=(1,2)),axis=1)
                gr=np.median([[v[r,g::8].max()-v[r,g::8].min() for g in range(8)] for r in range(len(S))])
                gm=np.median([np.ptp([v[r,g::8].max() for g in range(8)]) for r in range(len(S))])
                print("   %-10s min %6d p10 %6d med %6d p90 %6d max %6d | dmax %5d | in-group range %4d, spread of group max %4d"%(n,*q_,q_[4]-(prev if prev is not None else q_[4]),gr,gm)); prev=q_[4]
            k.unload(); continue
        if c.get("opts",{}).get("cyc"):
            dl=np.array([[(s[:,:nw,j+1]-s[:,:nw,j])&0xffffffff for j in range(len(names)-1)] for s in S])
            for j in range(len(names)-1): print("   %-10s -> %-10s  cyc: min %5d p25 %5d med %5d p75 %5d max %5d"%(names[j],names[j+1],*np.percentile(dl[:,j],[0,25,50,75,100])))
            print("   sel:"," ".join("%.2f"%np.mean([(s[g::8,:nw,18]>>13)&1 for s in S]) for g in range(8)))
            k.unload(); continue
        rows=[]
        for s in S:
            t0=s[:,:nw,0].min()
            rows.append([[np.min(s[:,:nw,j]-t0),np.median(s[:,:nw,j]-t0),np.max(s[:,:nw,j]-t0)] for j in range(len(names))])
        r=np.median(np.array(rows),axis=0)*0.01
        if c.get("brief"):
            cn=np.array([[(s[:,:nw,20]>>(3*j))&7 for j in range(10)] for s in S])
            ix={n:j for j,n in enumerate(names)}
            R=np.array(rows)*0.01
            print("   WO0max %.3f CHAIN %.3f"%(tm(R[:,ix["WOpub0"],2]-R[:,ix["start"],2]),tm(R[:,ix["end"],2]-R[:,ix["WOpub0"],2])) if "WOpub0" in ix else "","iter %.3f  U0->end %.3f end-laststart %.2f | ranges"%(tm(R[:,ix["Dpub1"],1]-R[:,ix["Dpub0"],1]),tm(R[:,ix["end"],2]-R[:,ix["Upub0"],1]),tm(R[:,ix["end"],2]-R[:,ix["start"],2]))," ".join("%s %.2f"%(n,np.median(R[:,j,2]-R[:,j,0])) for n,j in ix.items()),"| tries"," ".join("%.2f"%x for x in np.median(cn.mean(axis=(2,3)),axis=0)))
            k.unload(); continue
        for j,n in enumerate(names): print("   %-8s min %6.2f med %6.2f max %6.2f"%(n,*r[j]))
        s=S[-1]; t0=s[:,:nw+1,0].min()
        t0=s[:,5,0].min()
        for nm,sl,idx in (("loader",5,(0,4,1,6,7,8,2,3)),("helper",4,(0,4,6,1,2,3))):
            print("   %s:"%nm," ".join("[%d] %.2f/%.2f"%(j,np.median([np.median(x[:,sl,j]-x[:,5,0].min()) for x in S])*.01,np.median([np.max(x[:,sl,j]-x[:,5,0].min()) for x in S])*.01) for j in idx))
        print("   helper spins %.1f ; gap by group:"%np.mean(G.SPIN-s[:,nw,16])," ".join("%d/%d/%d"%(np.min(s[g::8,nw,20]),np.median(s[g::8,nw,20]),np.max(s[g::8,nw,20])) for g in range(8))," sel:"," ".join("%.2f"%np.mean((s[g::8,:nw,18]>>13)&1) for g in range(8)))
        print("   retries/wave mean %.2f max %d ; fast-mode frac %.2f"%(np.mean(G.SPIN-s[:,:nw,16]),np.max(G.SPIN-s[:,:nw,16]),np.mean(s[:,:nw,17]>0)))
        for ri,s in enumerate(S):
            f=s[:,:nw,19]; f=np.where(f>=256,f-256,0)
            if f.any():
                mn=f[f>0].min(); who=np.argwhere(f==mn)
                print("   rep",ri,"timeouts: first id",mn,"count",len(who),"who",who[:12].tolist())
        cn=np.array([[(s[:,:nw,20]>>(3*j))&7 for j in range(10)] for s in S])
        print("   mean retries per loop id (mod 8):"," ".join("%.2f"%x for x in np.median(cn.mean(axis=(2,3)),axis=0)))
    k.unload()
```
